```python
import torch

def _softmax(x, axis=-1):
    return torch.softmax(x, dim=axis)

def _gelu(x):
    return torch.nn.functional.gelu(x, approximate='tanh')

def _silu(x):
    return torch.nn.functional.silu(x)

def _sigmoid(x):
    return torch.sigmoid(x)

def _layernorm(x, axis=-1, eps=1e-05):
    m = x.mean(dim=axis, keepdim=True)
    v = x.var(dim=axis, keepdim=True, unbiased=False)
    return (x - m) / torch.sqrt(v + eps)

def _scatter_add(tgt, idx, src, axis=0):
    return tgt.clone().index_add_(axis, idx, src)

def _segment_sum(src, seg, n):
    out = torch.zeros((n,) + src.shape[1:], dtype=src.dtype)
    return out.index_add_(0, seg, src)

def _pad(x, pw):
    flat = tuple((v for pair in reversed(pw) for v in pair))
    return torch.nn.functional.pad(x, flat)
kernel_name = 'adaLN_cond__gqa_block_cached__mixer_s_mlp__prompt'

def setup_inputs():

    _w = lambda a: (lambda t: t.to(torch.bfloat16) if t.is_floating_point() else t)(torch.as_tensor(a))

    def _A_setup():
        B, Sq, D = (1, 2048, 448)
        Hq, Hkv, Sk, Dh = (16, 8, 2048, 256)
        assert Hq % Hkv == 0, (Hq, Hkv)
        return {'x': _w((lambda *s: torch.randn(*s, dtype=torch.bfloat16) * 0.05)(B, Sq, D)), 'k_cache': _w((lambda *s: torch.randn(*s, dtype=torch.bfloat16) * 3.2)(B, Hkv, Sk, Dh)), 'v_cache': _w((lambda *s: torch.randn(*s, dtype=torch.bfloat16) * 0.4)(B, Hkv, Sk, Dh)), 'wq': _w((lambda *s: torch.randn(*s, dtype=torch.bfloat16) * 3.2)(D, Hq * Dh) * D ** (-0.5)), 'wo': _w((lambda *s: torch.randn(*s, dtype=torch.bfloat16) * 0.4)(Hq * Dh, D) * (Hq * Dh) ** (-0.5))}
    _A_in = _A_setup()

    def _B_setup():
        B, S, D, F = (1, 2048, 448, 1792)
        return {'x': _w((lambda *s: torch.randn(*s, dtype=torch.bfloat16) * 0.05)(B, S, D)), 'w1': _w((lambda *s: torch.randn(*s, dtype=torch.bfloat16) * 3.2)(D, D) * D ** (-0.5)), 'w2': _w((lambda *s: torch.randn(*s, dtype=torch.bfloat16) * 3.2)(D, D) * D ** (-0.5)), 'w3': _w((lambda *s: torch.randn(*s, dtype=torch.bfloat16) * 3.2)(D, F) * D ** (-0.5)), 'w4': _w((lambda *s: torch.randn(*s, dtype=torch.bfloat16) * 3.2)(F, D) * F ** (-0.5))}
    _B_in = _B_setup()
    return {'A_x': _A_in['x'], 'A_k_cache': _A_in['k_cache'], 'A_v_cache': _A_in['v_cache'], 'A_wq': _A_in['wq'], 'A_wo': _A_in['wo'], 'B_x': _B_in['x'], 'B_w1': _B_in['w1'], 'B_w2': _B_in['w2'], 'B_w3': _B_in['w3'], 'B_w4': _B_in['w4'], 'c': _w((lambda *s: torch.randn(*s, dtype=torch.bfloat16) * 0.1)(1, 448) * 8.0), 'w_mod': _w((lambda *s: torch.randn(*s, dtype=torch.bfloat16) * 0.1)(448, 6 * 448) * 448 ** (-0.5) * 8.0)}

def reference(A_x, A_k_cache, A_v_cache, A_wq, A_wo, B_x, B_w1, B_w2, B_w3, B_w4, c, w_mod):

    def _A_ref(x, k_cache, v_cache, wq, wo):
        B, Sq, D = x.shape
        Hq, Dh = (16, 256)
        Hkv = k_cache.shape[1]
        rep = Hq // Hkv
        q = (lambda x, *d: x.permute(*d))((x @ wq).reshape(B, Sq, Hq, Dh), 0, 2, 1, 3)
        k = (lambda x, n, axis: torch.repeat_interleave(x, n, dim=axis))(k_cache, rep, axis=1)
        v = (lambda x, n, axis: torch.repeat_interleave(x, n, dim=axis))(v_cache, rep, axis=1)
        scores = torch.einsum('bhqd,bhkd->bhqk', q, k) * Dh ** (-0.5)
        p = _softmax(scores, axis=-1)
        o = torch.einsum('bhqk,bhkd->bhqd', p, v)
        return (lambda x, *d: x.permute(*d))(o, 0, 2, 1, 3).reshape(B, Sq, Hq * Dh) @ wo

    def _B_ref(x, w1, w2, w3, w4):
        B, S, D = x.shape
        h = _gelu(_layernorm(x, axis=-1) @ w1)
        c = D // 4
        g0 = _pad(h[:, :, 0 * c:1 * c], ((0, 0), (1, 0), (0, 0)))[:, :S, :]
        g1 = _pad(h[:, :, 1 * c:2 * c], ((0, 0), (0, 1), (0, 0)))[:, 1:, :]
        g2 = _pad(h[:, :, 2 * c:3 * c], ((0, 0), (2, 0), (0, 0)))[:, :S, :]
        g3 = _pad(h[:, :, 3 * c:], ((0, 0), (0, 2), (0, 0)))[:, 2:, :]
        hs = torch.concatenate([g0, g1, g2, g3], axis=-1) @ w2
        x1 = x + hs
        h2 = _gelu(_layernorm(x1, axis=-1) @ w3) @ w4
        return x1 + h2
    x = A_x
    mod = (_silu(c) @ w_mod).reshape(c.shape[0], 6, 1, -1)
    sa, ca, ga, sb, cb, gb = (mod[:, 0].clone(), mod[:, 1].clone(), mod[:, 2].clone(), mod[:, 3].clone(), mod[:, 4].clone(), mod[:, 5].clone())
    h = _layernorm(x, axis=-1) * (1 + ca) + sa
    x = x + ga * _A_ref(h, A_k_cache, A_v_cache, A_wq, A_wo)
    h = _layernorm(x, axis=-1) * (1 + cb) + sb
    x = x + gb * _B_ref(h, B_w1, B_w2, B_w3, B_w4)
    return x
```

```python
import re, struct

def f2u(x):
    return '0x%08x' % struct.unpack('<I', struct.pack('<f', x))[0]

def V(a, n=1):
    return f'v{a}' if n == 1 else f'v[{a}:{a+n-1}]'
def A(a, n=1):
    return f'a{a}' if n == 1 else f'a[{a}:{a+n-1}]'
def S(a, n=1):
    return f's{a}' if n == 1 else f's[{a}:{a+n-1}]'

class Asm:
    def __init__(self):
        self.L = []
    def __call__(self, s):
        for x in s.split('\n'):
            x = x.strip()
            if x: self.L.append(x)
    def ext(self, lst):
        for x in lst: self(x)
    def text(self):
        out = []
        for x in self.L:
            if x.endswith(':') or x.startswith('.') or x.startswith(';'): out.append(x)
            else: out.append('    ' + x)
        return '\n'.join(out) + '\n'

_reg = re.compile(r'^(-|abs\()?\s*([vas])(\d+|\[(\d+):(\d+)\])\)?$')
def regs_of(op):
    op = op.strip()
    if op == 'vcc': return {('s', 106), ('s', 107)}
    if op == 'exec': return {('s', 126), ('s', 127)}
    if op == 'm0': return {('s', 124)}
    m = _reg.match(op)
    if not m: return set()
    k = m.group(2)
    if m.group(4) is not None:
        return {(k, i) for i in range(int(m.group(4)), int(m.group(5)) + 1)}
    return {(k, int(m.group(3)))}

TRANS = ('v_exp_f32', 'v_log_f32', 'v_rcp_f32', 'v_rsq_f32', 'v_sqrt_f32', 'v_sin_f32', 'v_cos_f32')
def parse(line):
    line = line.split(';')[0].strip()
    parts = line.split(None, 1)
    op = parts[0]
    rest = parts[1] if len(parts) > 1 else ''
    ops = [x.strip() for x in re.split(r',(?![^\[]*\])', rest)] if rest else []
    clean = []
    for o in ops:
        clean.append(o.split()[0] if o else o)
    d = dict(op=op, defs=set(), uses=set(), cls='other', srcc=set(), line=line)
    R = [regs_of(o) for o in clean]
    if op.startswith('v_mfma'):
        d['cls'] = 'mfma'; d['defs'] = R[0]; d['uses'] = R[1] | R[2] | R[3]; d['srcc'] = R[3]; d['ab'] = R[1] | R[2]
        d['passes'] = 4 if '16x16x32' in op else 8
    elif op.startswith('v_cmp'):
        d['cls'] = 'valu'; d['defs'] = R[0]; d['uses'] = set().union(*R[1:])
    elif op.startswith('v_readfirstlane') or op.startswith('v_readlane'):
        d['cls'] = 'valu'; d['defs'] = R[0]; d['uses'] = set().union(*R[1:]); d['rl'] = True
    elif op.startswith('v_permlane'):
        d['cls'] = 'valu'; d['defs'] = R[0] | R[1]; d['uses'] = R[0] | R[1]; d['perm'] = True
    elif op.startswith('v_'):
        d['cls'] = 'valu'; d['defs'] = set(R[0]); d['uses'] = set().union(*R[1:]) if len(R) > 1 else set()
        if op.startswith(('v_fmac', 'v_pk_fmac')): d['uses'] |= R[0]
        if op.startswith(('v_add_co', 'v_addc_co', 'v_sub_co')): d['defs'] |= R[1]
        if op.startswith('v_cndmask') and len(R) == 3: d['uses'] |= regs_of('vcc')
        if '_dpp' in op or 'quad_perm' in line or 'row_' in line: d['dpp'] = True;
        if op.split('_e32')[0].split('_e64')[0] in TRANS: d['trans'] = True
        if 'sdwa' in op: d['sdwa'] = True
    elif op.startswith('ds_read'):
        d['cls'] = 'ds'; d['defs'] = R[0]; d['uses'] = set().union(*R[1:])
    elif op.startswith(('ds_write', 'ds_add')):
        d['cls'] = 'ds'; d['uses'] = set().union(*R)
    elif op.startswith(('ds_bpermute', 'ds_swizzle', 'ds_permute')):
        d['cls'] = 'ds'; d['defs'] = R[0]; d['uses'] = set().union(*R[1:])
    elif op.startswith(('buffer_load', 'global_load')):
        d['cls'] = 'vmem'
        if line.rstrip().endswith(' lds') or ' lds ' in line:
            d['uses'] = set().union(*R) | regs_of('m0'); d['dma'] = True
        else:
            d['defs'] = R[0]; d['uses'] = set().union(*R[1:])
    elif op.startswith(('buffer_store', 'global_store', 'buffer_atomic', 'global_atomic')):
        d['cls'] = 'vmem'; d['uses'] = set().union(*R); d['store'] = R[0] if op.startswith('buffer') else R[1]
        d['wide'] = op.endswith(('x3', 'x4'))
    elif op.startswith('s_nop'):
        d['cls'] = 'nop'; d['n'] = int(clean[0], 0) + 1
    elif op.startswith('s_'):
        d['cls'] = 'salu'
        if op.startswith(('s_cmp', 's_cbranch', 's_branch', 's_waitcnt', 's_barrier', 's_endpgm', 's_setprio', 's_sleep')):
            d['uses'] = set().union(*R) if R else set()
        else:
            d['defs'] = R[0] if R else set(); d['uses'] = set().union(*R[1:]) if len(R) > 1 else set()
            if 'saveexec' in op: d['defs'] |= regs_of('exec')
    return d

def check_hazards(lines, name=''):
    ins = []
    for x in lines:
        if x.endswith(':') or x.startswith('.') or x.startswith(';'): continue
        ins.append(parse(x))
    probs = []
    W = 24
    for i, c in enumerate(ins):
        dist = 0
        for j in range(i - 1, max(-1, i - W - 1), -1):
            p = ins[j]
            need = 0
            isv = lambda r: r[0] in 'va'
            if p['cls'] == 'mfma':
                n = p['passes']
                tab = {4: (8, 6, 3), 8: (12, 10, 7)}[n]
                if c['cls'] == 'mfma':
                    if p['defs'] & c['ab']: need = max(need, tab[0])
                    ov = p['defs'] & c['srcc']
                    if ov and not (p['defs'] == c['srcc'] and p['passes'] == c['passes']): need = max(need, tab[1])
                    if (p['defs'] & c['defs']) and not ov: need = max(need, tab[1])
                elif c['cls'] in ('valu', 'ds', 'vmem'):
                    if p['defs'] & (c['uses'] | c['defs']): need = max(need, tab[0])
                    if c['cls'] == 'valu' and (p['srcc'] & c['defs']): need = max(need, tab[2])
            elif p['cls'] == 'valu':
                vd = {r for r in p['defs'] if isv(r)}; sd = {r for r in p['defs'] if r[0] == 's'}
                if c['cls'] == 'mfma' and (vd & c['uses']): need = max(need, 2)
                if c['cls'] == 'valu':
                    if p.get('trans') and not c.get('trans') and (vd & c['uses']): need = max(need, 1)
                    if p.get('trans') and c.get('trans') and (vd & c['uses']): need = max(need, 1)
                    if c.get('dpp') and (vd & c['uses']): need = max(need, 2)
                    if c.get('perm') and (vd & c['uses']): need = max(need, 2)
                    if c.get('rl') and (vd & c['uses']): need = max(need, 1)
                    if p.get('sdwa') and (vd & c['uses']): need = max(need, 1)
                    if sd & c['uses']: need = max(need, 2)
                if c['cls'] == 'vmem' and (sd & c['uses']): need = max(need, 5)
                if c['cls'] == 'salu' and (sd & c['uses']) and not c['op'].startswith('s_cbranch'): need = max(need, 1)
            elif p['cls'] == 'salu':
                if ('s', 124) in p['defs'] and c.get('dma'): need = max(need, 1)
            elif p['cls'] == 'vmem' and p.get('wide'):
                if p['store'] & c['defs']: need = max(need, 2 if c['cls'] == 'valu' else 1)
            if need > dist:
                probs.append(f'{name}: need {need} have {dist}: [{p["line"]}] -> [{c["line"]}]')
            dist += p['n'] if p['cls'] == 'nop' else 1
            if dist >= 20: break
    return probs


class Emit(Asm):
    def __init__(self):
        super().__init__()
        self.vmq = []; self.dsq = []
    def vm(self, s, tag=None):
        self(s); self.vmq.append(tag)
    def ds(self, s, tag=None):
        self(s); self.dsq.append(tag)
    def _need(self, q, tags):
        idx = -1
        for i, t in enumerate(q):
            if t in tags: idx = i
        return idx
    def waitvm(self, *tags):
        idx = self._need(self.vmq, tags)
        if idx < 0: return
        n = len(self.vmq) - 1 - idx
        assert n <= 63, n
        self(f's_waitcnt vmcnt({n})'); self.vmq = self.vmq[idx + 1:]
    def waitds(self, *tags):
        idx = self._need(self.dsq, tags)
        if idx < 0: return
        n = len(self.dsq) - 1 - idx
        if n > 15:
            n = 15; idx = len(self.dsq) - 1 - 15
        self(f's_waitcnt lgkmcnt({n})'); self.dsq = self.dsq[idx + 1:]
    def waitds0(self):
        self('s_waitcnt lgkmcnt(0)'); self.dsq = []
    def waitvm0(self):
        self('s_waitcnt vmcnt(0)'); self.vmq = []
    def item(self, it):
        if isinstance(it, str): self(it)
        elif it[0] == 'vm': self.vm(it[1], it[2])
        elif it[0] == 'ds': self.ds(it[1], it[2])
        elif it[0] == 'wvm': self.waitvm(*it[1:])
        elif it[0] == 'wds': self.waitds(*it[1:])
        else: raise ValueError(it)

def srd(e, d, lo, hi, size):
    if lo != d: e(f's_mov_b32 s{d}, s{lo}')
    if hi != d + 1: e(f's_mov_b32 s{d+1}, s{hi}')
    e(f's_mov_b32 s{d+2}, {size}')
    e(f's_mov_b32 s{d+3}, 0x20000')

def srd_off(e, d, lo, hi, off, size):
    e(f's_add_u32 s{d}, s{lo}, {off}')
    e(f's_addc_u32 s{d+1}, s{hi}, 0')
    e(f's_mov_b32 s{d+2}, {size}')
    e(f's_mov_b32 s{d+3}, 0x20000')

def descriptor(name, vgpr, accum, sgpr=102):
    return f'''.p2align 6
.amdhsa_kernel {name}
  .amdhsa_next_free_vgpr {vgpr}
  .amdhsa_next_free_sgpr {sgpr}
  .amdhsa_accum_offset {accum}
  .amdhsa_group_segment_fixed_size 0
  .amdhsa_kernarg_size 120
  .amdhsa_user_sgpr_count 2
  .amdhsa_user_sgpr_kernarg_segment_ptr 1
  .amdhsa_system_sgpr_workgroup_id_x 1
.end_amdhsa_kernel
'''
def header(e, name):
    e(f'.globl {name}\n.p2align 8\n.type {name},@function\n{name}:')

def xsum_grp(e, r, t):
    e(f'v_mov_b32 v{t}, v{r}\ns_nop 1\nv_permlane32_swap_b32 v{r}, v{t}\ns_nop 1\nv_add_f32 v{r}, v{r}, v{t}')
    e(f'v_mov_b32 v{t}, v{r}\ns_nop 1\nv_permlane16_swap_b32 v{r}, v{t}\ns_nop 1\nv_add_f32 v{r}, v{r}, v{t}')
def xop_grp_multi(e, rs, ts, op):
    for sw in ('v_permlane32_swap_b32', 'v_permlane16_swap_b32'):
        for r, t in zip(rs, ts): e(f'v_mov_b32 v{t}, v{r}')
        e('s_nop 1')
        for r, t in zip(rs, ts): e(f'{sw} v{r}, v{t}')
        e('s_nop 1')
        for r, t in zip(rs, ts): e(f'{op} v{r}, v{r}, v{t}')
```

```python
FB = 2048 * 448 * 2
MODN = 0
MODF = 0x3000
PART = 0x10000
X2 = PART + 8 * FB
HH = X2 + FB
UU = HH + FB
X1 = UU + FB
PART2 = X1 + FB
W1F = PART2 + 8 * FB
W2F = W1F + 448 * 448 * 2
W3F = W2F + 448 * 448 * 2
W4F = W3F + 448 * 1792 * 2
WSEND = W4F + 448 * 1792 * 2
DBG = WSEND
A_X, A_K, A_V, A_WQ, A_WO, A_BX, A_W1, A_W2, A_W3, A_W4, A_C, A_WM, A_OUT, A_DBG, A_WS = [8 * i for i in range(15)]
LOG2E = 1.4426950408889634
```

```python
from asmlib import *
from common import *

def gen_k1(name='k1_mod_kernel'):
    e = Emit()
    header(e, name)
    e('s_cmp_ge_u32 s2, 84\ns_cbranch_scc1 L_k1_done')
    pf = Prof(e, 0, [70, 72, 74], 20, 40); pf.stamp()
    if Prof.on: e('s_mov_b32 s40, 0')
    e(f's_load_dwordx4 s[4:7], s[0:1], {A_C}')
    e(f's_load_dwordx2 s[20:21], s[0:1], {A_WS}')
    e('v_and_b32 v1, 3, v0\nv_lshrrev_b32 v2, 2, v0')
    e('v_mul_u32_u24 v3, 5376, v2\nv_lshlrev_b32 v4, 4, v1\nv_add_u32 v3, v3, v4')
    e('s_lshl_b32 s3, s2, 6\nv_add_u32 v3, s3, v3\nv_lshlrev_b32 v5, 1, v2')
    e('s_waitcnt lgkmcnt(0)')
    srd(e, 8, 4, 5, 896)
    srd(e, 12, 6, 7, 448 * 5376)
    srd(e, 16, 20, 21, 0x4800)
    for i in range(7):
        e(f's_mov_b32 s{24+i}, {i*64*5376}')
    for i in range(7):
        e.vm(f'buffer_load_ushort v{8+i}, v5, s[8:11], 0 offen offset:{i*128}', 'c')
    for i in range(7):
        e.vm(f'buffer_load_dwordx4 {V(16+4*i,4)}, v3, s[12:15], s{24+i} offen', f'w{i}')
    for i in range(8): e(f'v_mov_b32 v{48+i}, 0')
    e.waitvm('c')
    e(f's_mov_b32 s22, {f2u(-LOG2E)}')
    for i in range(7): e(f'v_lshlrev_b32 v{8+i}, 16, v{8+i}')
    for i in range(7): e(f'v_mul_f32 v{56+i}, s22, v{8+i}')
    for i in range(7): e(f'v_exp_f32 v{56+i}, v{56+i}')
    for i in range(7): e(f'v_add_f32 v{56+i}, 1.0, v{56+i}')
    for i in range(7): e(f'v_rcp_f32 v{56+i}, v{56+i}')
    for i in range(7): e(f'v_mul_f32 v{8+i}, v{8+i}, v{56+i}')
    for i in range(7): e(f'v_cvt_pk_bf16_f32 v{8+i}, v{8+i}, v{8+i}')
    for i in range(7): e(f'v_lshlrev_b32 v{8+i}, 16, v{8+i}')
    for i in range(7):
        e.waitvm(f'w{i}')
        for q in range(4):
            e(f'v_lshlrev_b32 v56, 16, v{16+4*i+q}\nv_and_b32 v57, 0xffff0000, v{16+4*i+q}')
            e(f'v_fmac_f32 v{48+2*q}, v56, v{8+i}\nv_fmac_f32 v{49+2*q}, v57, v{8+i}')
    for rot in (4, 8):
        e('s_nop 1')
        for i in range(8): e(f'v_add_f32_dpp v{48+i}, v{48+i}, v{48+i} row_ror:{rot} row_mask:0xf bank_mask:0xf')
    xop_grp_multi(e, list(range(48, 56)), list(range(56, 64)), 'v_add_f32')
    e('v_and_b32 v6, 63, v0\nv_lshrrev_b32 v7, 6, v0\nv_lshlrev_b32 v7, 7, v7\nv_lshlrev_b32 v4, 5, v1\nv_add_u32 v7, v7, v4')
    e('v_cmp_gt_u32 vcc, 4, v6\ns_nop 0\ns_and_saveexec_b64 s[30:31], vcc')
    e('ds_write_b128 v7, v[48:51]\nds_write_b128 v7, v[52:55] offset:16')
    e('s_mov_b64 exec, s[30:31]\ns_waitcnt lgkmcnt(0)\ns_barrier')
    e('v_cmp_gt_u32 vcc, 32, v0\ns_nop 0\ns_and_saveexec_b64 s[30:31], vcc\ns_cbranch_execz L_k1_done')
    e('v_lshlrev_b32 v7, 2, v0')
    for w in range(4): e(f'ds_read_b32 v{8+w}, v7 offset:{w*128}')
    e(f's_mul_hi_u32 s23, s2, {(2**32 + 13)//14}')
    e('s_waitcnt lgkmcnt(0)')
    e('v_add_f32 v8, v8, v9\nv_add_f32 v10, v10, v11\nv_add_f32 v8, v8, v10')
    e('v_cvt_pk_bf16_f32 v8, v8, v8\nv_lshlrev_b32 v8, 16, v8')
    e('s_cmp_eq_u32 s23, 1\ns_cselect_b32 s24, 1.0, 0\ns_cmp_eq_u32 s23, 4\ns_cselect_b32 s24, 1.0, s24')
    e('v_add_f32 v8, s24, v8\nv_cvt_pk_bf16_f32 v9, v8, v8\nv_lshlrev_b32 v8, 16, v9')
    e('s_lshl_b32 s3, s2, 7\nv_add_u32 v7, s3, v7')
    e(f'buffer_store_dword v8, v7, s[16:19], 0 offen offset:{MODN}')
    e('v_bfe_u32 v10, v0, 2, 2\nv_lshlrev_b32 v10, 3, v10\nv_bfe_u32 v11, v0, 4, 1\nv_lshlrev_b32 v11, 2, v11')
    e('v_and_b32 v12, 3, v0\nv_add3_u32 v10, v10, v11, v12\nv_lshlrev_b32 v10, 1, v10')
    e(f's_lshl_b32 s3, s2, 6\ns_add_u32 s3, s3, {MODF}\nv_add_u32 v10, s3, v10')
    e('buffer_store_short v9, v10, s[16:19], 0 offen')
    e('s_waitcnt vmcnt(0)')
    pf.flush(DBG, 8, 41)
    e('L_k1_done:\ns_endpgm')
    return e, descriptor(name, 64, 64), f'; @launch kernel={name} grid=(84,1,1) block=(256,1,1) lds=512'
```

```python
from asmlib import *
from common import *

sK, sV, sWq, sWo, sX, sMod, sPart, sSrc, sDst = 4, 8, 12, 16, 20, 24, 28, 32, 36
sw, stb, skvh, scnt = 40, 41, 42, 43
SO0, SO1 = 44, 48
sW4k, sTHR, sQS, sT0 = 52, 53, 54, 55
SWQ = 56
sRing, sT1, sT2, sT3 = 60, 61, 62, 63
SSD = 64
sRet = 72
sWoK = 74
sPtr = 76
Q, Sr, P, FR = 0, 128, 160, 192
KA, VA, DK, DV, NM, LS, PS, TM, CK = 216, 218, 222, 223, 224, 240, 244, 248, 252
XT = 208
KSLOT = [0, 32768]; VBASE = 65536; SPARE = 131072

class K2:
    def __init__(self, name='k2_attn_kernel', bias=0.0, thr=60.0, waitper=2, dbg=None):
        self.name = name; self.bias = bias; self.thr = thr; self.waitper = waitper; self.dbg = dbg
        self.e = Emit(); self.stubs = []; self.nstub = 0

    def setup(self):
        e = self.e
        header(e, self.name)
        e('s_cmp_ge_u32 s2, 256\ns_cbranch_scc1 L_k2_done')
        e(f's_load_dwordx8 s[76:83], s[0:1], {A_X}')
        e(f's_load_dwordx2 s[84:85], s[0:1], {A_WO}')
        e(f's_load_dwordx8 s[88:95], s[0:1], {A_W1}')
        e(f's_load_dwordx2 s[86:87], s[0:1], {A_WS}')
        e(f'v_lshrrev_b32 v1, 6, v0\nv_and_b32 v0, 63, v0\ns_and_b32 s{skvh}, s2, 7\nv_readfirstlane_b32 s{sw}, v1\ns_lshr_b32 s{stb}, s2, 3')
        e('v_and_b32 v1, 15, v0\nv_lshrrev_b32 v2, 4, v0\nv_lshrrev_b32 v3, 3, v0\nv_and_b32 v4, 7, v0')
        e('v_and_b32 v5, 6, v3\nv_xor_b32 v5, v4, v5\nv_lshlrev_b32 v5, 4, v5')
        e(f's_lshl_b32 s{sW4k}, s{sw}, 12')
        e(f's_lshr_b32 s{sT0}, s{sw}, 1')
        e(f's_lshl_b32 s{sT1}, s{sT0}, 14')
        e(f's_lshl_b32 s{sT2}, s{stb}, 15\nv_lshlrev_b32 v6, 9, v3\nv_add3_u32 v{DK}, v6, v5, s{sT2}\nv_mov_b32 v{DV}, v{DK}')
        e('v_and_b32 v6, 7, v1\nv_lshrrev_b32 v7, 3, v1\nv_lshlrev_b32 v7, 10, v7\nv_lshlrev_b32 v8, 7, v6\nv_add_u32 v7, v7, v8')
        e(f'v_add_u32 v7, s{sT1}, v7\nv_and_b32 v6, 6, v6\nv_xor_b32 v6, v2, v6\nv_lshlrev_b32 v6, 4, v6')
        e(f'v_add_u32 v{KA}, v7, v6\nv_xor_b32 v6, 64, v6\nv_add_u32 v{KA+1}, v7, v6')
        e('v_and_b32 v6, 1, v2\nv_lshlrev_b32 v6, 2, v6\nv_lshrrev_b32 v7, 2, v1\nv_add_u32 v6, v6, v7')
        e('v_lshrrev_b32 v7, 1, v2\nv_lshlrev_b32 v7, 10, v7\nv_lshlrev_b32 v8, 7, v6\nv_add_u32 v7, v7, v8')
        e('v_and_b32 v8, 1, v1\nv_lshlrev_b32 v8, 3, v8\nv_add_u32 v7, v7, v8')
        e('v_and_b32 v6, 6, v6\nv_bfe_u32 v8, v1, 1, 1\nv_xor_b32 v6, v6, v8')
        e(f's_add_u32 s{sT2}, s{sT1}, {VBASE}')
        for k in range(4):
            e(f'v_xor_b32 v8, {2*k}, v6\nv_lshlrev_b32 v8, 4, v8\nv_add3_u32 v{VA+k}, v7, v8, s{sT2}')
        e(f's_lshl_b32 s{sT2}, s{sw}, 7\ns_xor_b32 s{sT3}, s{sT2}, 256\ns_add_u32 s{sT3}, s{sT3}, 16384')
        for i in range(4):
            e(f's_add_u32 s{SO0+i}, s{sT2}, {i*3072}\ns_add_u32 s{SO1+i}, s{sT3}, {i*3072}')
        e(f's_mov_b32 s{sTHR}, {f2u(2.0**(self.thr-self.bias))}\ns_mov_b32 s{sQS}, {f2u(LOG2E/16)}')
        e('s_waitcnt lgkmcnt(0)')
        e(f's_lshl_b32 s{sT2}, s{skvh}, 20')
        srd_off(e, sK, 78, 79, f's{sT2}', 1 << 20)
        srd_off(e, sV, 80, 81, f's{sT2}', 1 << 20)
        srd(e, sWq, 82, 83, 448 * 8192)
        e(f's_mul_i32 s{sT2}, s{skvh}, {512*896}')
        srd_off(e, sWo, 84, 85, f's{sT2}', 512 * 896)
        srd(e, sX, 76, 77, FB)
        srd_off(e, sMod, 86, 87, MODN, 3584)
        e(f's_mul_i32 s{sT2}, s{skvh}, {FB}\ns_add_u32 s{sT2}, s{sT2}, {PART}')
        srd_off(e, sPart, 86, 87, f's{sT2}', FB)

    def side_setup(self):
        e = self.e
        t, ks, u, rs, nk = 96, 97, 98, 99, 100
        e(f's_lshl_b32 s{t}, s2, 2\ns_add_u32 s{t}, s{t}, s{sw}\ns_min_u32 s{t}, s{t}, 979')
        e(f's_mov_b32 s{sSrc}, s88\ns_mov_b32 s{sSrc+1}, s89\ns_mov_b32 s{sSrc+2}, {448*896}\ns_mov_b32 s{sSrc+3}, 0x20000')
        e(f's_mov_b32 s{rs}, 896\ns_mov_b32 s{nk}, {14*1024}\ns_mov_b32 s{sT2}, {W1F}\ns_mov_b32 s{sT3}, {(2**32+6)//7}\ns_mov_b32 s101, 7')
        e(f's_cmp_lt_u32 s{t}, 98\ns_cbranch_scc1 L_side_sel')
        e(f's_mov_b32 s{sSrc}, s90\ns_mov_b32 s{sSrc+1}, s91\ns_mov_b32 s{sT2}, {W2F}\ns_sub_u32 s{t}, s{t}, 98')
        e(f's_cmp_lt_u32 s{t}, 98\ns_cbranch_scc1 L_side_sel')
        e(f's_mov_b32 s{sSrc}, s92\ns_mov_b32 s{sSrc+1}, s93\ns_mov_b32 s{sSrc+2}, {448*3584}\ns_mov_b32 s{sT2}, {W3F}\ns_sub_u32 s{t}, s{t}, 98')
        e(f's_mov_b32 s{rs}, 3584\ns_mov_b32 s{sT3}, {(2**32+27)//28}\ns_mov_b32 s101, 28')
        e(f's_cmp_lt_u32 s{t}, 392\ns_cbranch_scc1 L_side_sel')
        e(f's_mov_b32 s{sSrc}, s94\ns_mov_b32 s{sSrc+1}, s95\ns_mov_b32 s{sT2}, {W4F}\ns_sub_u32 s{t}, s{t}, 392')
        e(f's_mov_b32 s{rs}, 896\ns_mov_b32 s{nk}, {56*1024}\ns_mov_b32 s{sT3}, {(2**32+6)//7}\ns_mov_b32 s101, 7')
        e('L_side_sel:')
        e(f's_mul_hi_u32 s{ks}, s{t}, s{sT3}\ns_mul_i32 s{u}, s{ks}, s101\ns_sub_u32 s{u}, s{t}, s{u}')
        srd_off(e, sDst, 86, 87, f's{sT2}', 448 * 3584)
        e(f's_mul_i32 s{sT2}, s{ks}, s{rs}\ns_lshl_b32 s{sT2}, s{sT2}, 5\ns_lshl_b32 s{sT3}, s{u}, 7\ns_add_u32 s{SSD}, s{sT2}, s{sT3}')
        e(f's_lshl_b32 s{sT2}, s{rs}, 3\ns_sub_u32 s{sT2}, s{sT2}, 1024')
        for i in range(1, 4): e(f's_add_u32 s{SSD+i}, s{SSD+i-1}, s{sT2}')
        e(f's_mul_i32 s{sT2}, s{u}, s{nk}\ns_lshl_b32 s{sT2}, s{sT2}, 2\ns_lshl_b32 s{sT3}, s{ks}, 10\ns_add_u32 s{SSD+4}, s{sT2}, s{sT3}')
        for i in range(1, 4): e(f's_add_u32 s{SSD+4+i}, s{SSD+3+i}, s{nk}')
        e(f'v_mul_lo_u32 v214, v3, s{rs}\nv_add_u32 v214, v214, v5')

    def prologue(self):
        e = self.e
        vXA, vPA, vHW, vHR, vWD, vWA, vQW, vLL, vSD = 200, 201, 202, 203, 204, 206, 210, 211, 214
        vSR = 240
        PAR = SPARE; SIDE = SPARE + 4096
        self.side_setup()
        e(f'v_lshlrev_b32 v{vLL}, 4, v0')
        e(f's_lshl_b32 s{sT2}, s{stb}, 6\ns_lshl_b32 s{sT3}, s{sw}, 4\ns_add_u32 s{sT2}, s{sT2}, s{sT3}')
        e(f'v_lshrrev_b32 v6, 2, v0\nv_and_b32 v7, 3, v0\nv_add_u32 v8, s{sT2}, v6\nv_mul_u32_u24 v8, 896, v8\nv_lshlrev_b32 v9, 4, v7\nv_add_u32 v{vXA}, v8, v9')
        e(f'v_lshlrev_b32 v{vPA}, 5, v7\nv_add_u32 v{vPA}, {PAR}, v{vPA}')
        e(f's_mul_i32 s{sT2}, s{sw}, 14336\nv_lshlrev_b32 v8, 1, v7\nv_xor_b32 v8, v6, v8\nv_lshl_add_u32 v8, v7, 4, v8\nv_lshlrev_b32 v8, 4, v8\nv_add_u32 v{vHW}, s{sT2}, v8')
        e(f'v_lshlrev_b32 v8, 1, v2\nv_xor_b32 v8, v1, v8\nv_lshl_add_u32 v8, v2, 4, v8\nv_lshlrev_b32 v{vHR}, 4, v8')
        e(f'v_and_b32 v8, 2, v3\nv_xor_b32 v8, v4, v8\nv_lshlrev_b32 v8, 4, v8\nv_lshl_add_u32 v{vWD}, v3, 13, v8\nv_xor_b32 v{vWD+1}, 64, v{vWD}')
        e(f's_and_b32 s{sT2}, s{sw}, 1\ns_lshl_b32 s{sT2}, s{sT2}, 9\ns_lshl_b32 s{sT3}, s{skvh}, 10\ns_add_u32 s{sT2}, s{sT2}, s{sT3}')
        e(f's_lshr_b32 s{sT3}, s{sw}, 1\ns_lshl_b32 s{sT3}, s{sT3}, 8\ns_add_u32 s{SWQ}, s{sT2}, s{sT3}')
        for i in range(1, 4): e(f's_add_u32 s{SWQ+i}, s{SWQ+i-1}, {65536-1024}')
        e(f's_lshl_b32 s{sRing}, s{sw}, 14\ns_add_u32 s{sRing}, s{sRing}, {VBASE}')
        e('v_lshlrev_b32 v6, 10, v2\nv_lshrrev_b32 v7, 2, v1\nv_lshl_add_u32 v6, v7, 7, v6\nv_and_b32 v7, 1, v1\nv_lshl_add_u32 v6, v7, 3, v6')
        e('v_bfe_u32 v7, v1, 3, 1\nv_and_b32 v8, 1, v2\nv_lshl_add_u32 v7, v8, 1, v7\nv_lshlrev_b32 v7, 1, v7\nv_bfe_u32 v8, v1, 1, 1\nv_xor_b32 v7, v7, v8')
        for k in range(4):
            e(f'v_xor_b32 v8, {2*k}, v7\nv_lshlrev_b32 v8, 4, v8\nv_add3_u32 v{vWA+k}, v6, v8, s{sRing}')
        e(f'v_lshrrev_b32 v6, 1, v2\nv_lshl_add_u32 v6, v6, 4, v1\nv_lshlrev_b32 v6, 4, v6\nv_and_b32 v7, 1, v2\nv_lshl_add_u32 v{vQW}, v7, 3, v6')
        e(f's_lshr_b32 s{sT0}, s{sw}, 1\ns_lshl_b32 s{sT0}, s{sT0}, 14\ns_sub_u32 s{sT2}, s{sW4k}, s{sT0}\ns_add_u32 s{sT2}, s{sT2}, {SIDE-VBASE}')
        for k in range(4): e(f'v_add_u32 v{vSR+k}, s{sT2}, v{VA+k}')
        e(f's_lshl_b32 s{sT2}, s{sw}, 10\ns_add_u32 m0, s{sT2}, {PAR}\ns_nop 0')
        e.vm(f'buffer_load_dwordx4 v{vLL}, s[{sMod}:{sMod+3}], s{sT2} offen lds', 'par')
        RAW = 112
        for ks in range(14):
            e.vm(f'buffer_load_dwordx4 {V(RAW+4*ks,4)}, v{vXA}, s[{sX}:{sX+3}], 0 offen offset:{ks*64}', f'x{ks}')
        def wq_dma(n):
            it = [f's_add_u32 m0, s{sRing}, {(n%4)*4096}', 's_nop 0']
            for rg in range(4):
                it.append(('vm', f'buffer_load_dwordx4 v{vWD+(rg&1)}, s[{sWq}:{sWq+3}], s{SWQ+rg} offen offset:{rg*1024} lds', f'wq{n}'))
            adv = 262144 if n % 14 != 13 else (128 - 13 * 262144) & 0xffffffff
            it += [f'v_add_u32 v{vWD}, {adv:#x}, v{vWD}', f'v_add_u32 v{vWD+1}, {adv:#x}, v{vWD+1}']
            return it
        for n in range(4):
            for it in wq_dma(n): e.item(it)
        e(f's_add_u32 m0, s{sW4k}, {SIDE}\ns_nop 0')
        for i in range(4):
            e.vm(f'buffer_load_dwordx4 v{vSD}, s[{sSrc}:{sSrc+3}], s{SSD+i} offen offset:{i*1024} lds', 'side')
        for ks in range(14):
            e.waitvm(f'x{ks}')
            for q in range(4):
                r = RAW + 4 * ks + q; d = 8 * ks + 2 * q
                e(f'v_lshlrev_b32 v{d}, 16, v{r}\nv_and_b32 v{d+1}, 0xffff0000, v{r}')
        T = 168
        for a in range(4): e(f'v_pk_add_f32 {V(T+2*a,2)}, {V(2*a,2)}, {V(8+2*a,2)}')
        for i in range(8, 56): e(f'v_pk_add_f32 {V(T+2*(i%4),2)}, {V(T+2*(i%4),2)}, {V(2*i,2)}')
        def fold():
            e(f'v_pk_add_f32 {V(T,2)}, {V(T,2)}, {V(T+2,2)}\nv_pk_add_f32 {V(T+4,2)}, {V(T+4,2)}, {V(T+6,2)}')
            e(f'v_pk_add_f32 {V(T,2)}, {V(T,2)}, {V(T+4,2)}\nv_add_f32 v{T}, v{T}, v{T+1}\ns_nop 1')
            e(f'v_add_f32_dpp v{T}, v{T}, v{T} quad_perm:[1,0,3,2] row_mask:0xf bank_mask:0xf\ns_nop 1')
            e(f'v_add_f32_dpp v{T}, v{T}, v{T} quad_perm:[2,3,0,1] row_mask:0xf bank_mask:0xf')
        fold()
        e(f'v_mul_f32 v{T+8}, {f2u(-1.0/448)}, v{T}')
        for i in range(56): e(f'v_pk_add_f32 {V(2*i,2)}, {V(2*i,2)}, {V(T+8,2)} op_sel_hi:[1,0]')
        for a in range(4): e(f'v_pk_mul_f32 {V(T+2*a,2)}, {V(2*a,2)}, {V(2*a,2)}')
        for i in range(4, 56): e(f'v_pk_fma_f32 {V(T+2*(i%4),2)}, {V(2*i,2)}, {V(2*i,2)}, {V(T+2*(i%4),2)}')
        fold()
        e(f'v_mov_b32 v{T+9}, {f2u(1e-5)}\nv_fmac_f32 v{T+9}, {f2u(1.0/448)}, v{T}\nv_rsq_f32 v{T+8}, v{T+9}')
        e('s_barrier')
        PB = T + 10
        PB = RAW + 24
        PB = 180
        def rdpar(ks, base):
            for h in range(2):
                e.ds(f'ds_read_b128 {V(base+4*h,4)}, v{vPA} offset:{ks*128+h*16}', f'p{ks}')
                e.ds(f'ds_read_b128 {V(base+8+4*h,4)}, v{vPA} offset:{1792+ks*128+h*16}', f'p{ks}')
        bufs = [180, NM]
        rdpar(0, bufs[0])
        for ks in range(14):
            if ks + 1 < 14: rdpar(ks + 1, bufs[(ks + 1) & 1])
            for q in range(4): e(f'v_pk_mul_f32 {V(8*ks+2*q,2)}, {V(8*ks+2*q,2)}, {V(T+8,2)} op_sel_hi:[1,0]')
            e.waitds(f'p{ks}')
            b = bufs[ks & 1]
            for q in range(4): e(f'v_pk_fma_f32 {V(8*ks+2*q,2)}, {V(8*ks+2*q,2)}, {V(b+8+2*q,2)}, {V(b+2*q,2)}')
            for q in range(4): e(f'v_cvt_pk_bf16_f32 v{RAW+4*ks+q}, v{8*ks+2*q}, v{8*ks+2*q+1}')
            e.ds(f'ds_write_b128 v{vHW}, {V(RAW+4*ks,4)} offset:{ks*1024}', 'hw')
        e.waitds0()
        e('s_barrier')
        for ks in range(14):
            for g in range(4):
                e.ds(f'ds_read_b128 {A((ks*4+g)*4,4)}, v{vHR} offset:{(g*14+ks)*1024}', 'hr')
        e.waitvm('side')
        for k in range(4):
            for tt in range(2):
                e.ds(f'ds_read_b64_tr_b16 {V(160+4*k+2*tt,2)}, v{vSR+k} offset:{tt*2048}', 'sr')
        e.waitds0()
        e('s_barrier')
        for k in range(4):
            e.vm(f'buffer_store_dwordx4 {V(160+4*k,4)}, v{vLL}, s[{sDst}:{sDst+3}], s{SSD+4+k} offen', 'sst')
        WF = 128
        def wq_reads(n):
            it = []
            for db in range(4):
                for tt in range(2):
                    it.append(('ds', f'ds_read_b64_tr_b16 {V(WF+16*(n&1)+4*db+2*tt,2)}, v{vWA+db} offset:{(n%4)*4096+tt*512}', f'wr{n}'))
            return it
        def post(cs):
            it = []; t = 176
            base = f'v{vQW}'
            for g in range(4):
                for db in range(4):
                    a = 64 * cs + (db * 4 + g) * 4
                    tt = t + 2 * ((g * 4 + db) % 4)
                    it.append(f'v_mul_f32 v{a}, s{sQS}, v{a}'); it.append(f'v_mul_f32 v{a+1}, s{sQS}, v{a+1}')
                    it.append(f'v_mul_f32 v{a+2}, s{sQS}, v{a+2}'); it.append(f'v_mul_f32 v{a+3}, s{sQS}, v{a+3}')
                    it.append(f'v_cvt_pk_bf16_f32 v{tt}, v{a}, v{a+1}'); it.append(f'v_cvt_pk_bf16_f32 v{tt+1}, v{a+2}, v{a+3}')
                    it.append(('ds', f'ds_write_b64 v{212+cs}, {V(tt,2)} offset:{(g*2+(db>>1))*1024+(db&1)*512}', 'qw'))
            return it
        e(f's_lshl_b32 s{sT2}, s{sw}, 13\ns_add_u32 s{sT2}, s{sT2}, {SPARE}\nv_add_u32 v212, s{sT2}, v{vQW}\nv_add_u32 v213, s{sRing}, v{vQW}')
        kdma = []
        for sl in range(2):
            x = self.kv_dma('K', sl); kdma += [x[:6], x[6:]]
        e.waitvm('wq0')
        for it in wq_reads(0): e.item(it)
        post0 = post(0)
        for n in range(28):
            cs, ks = divmod(n, 14)
            fill = []
            if n + 1 < 28: fill += [('wvm', f'wq{n+1}')] + wq_reads(n + 1)
            if n + 4 < 28: fill += wq_dma(n + 4)
            if kdma and n % 2 == 1: fill += kdma.pop(0)
            if n >= 15 and post0:
                fill += post0[:10]; post0 = post0[10:]
            e.waitds(f'wr{n}')
            nf = len(fill); k = 0; done = 0
            for db in range(4):
                for g in range(4):
                    a = 64 * cs + (db * 4 + g) * 4
                    c = '0' if ks == 0 else V(a, 4)
                    e(f'v_mfma_f32_16x16x32_bf16 {V(a,4)}, {V(WF+16*(n&1)+4*db,4)}, {A((ks*4+g)*4,4)}, {c}')
                    k += 1
                    while done < (nf * k + 15) // 16 and done < nf:
                        e.item(fill[done]); done += 1
        assert not kdma and not post0
        e('s_nop 7')
        for it in post(1): e.item(it)
        e.waitds0()
        e.waitvm('K0', 'K1')
        e('s_barrier')
        e(f's_xor_b32 s{sT2}, s{sw}, 2\ns_lshl_b32 s{sT3}, s{sT2}, 13\ns_add_u32 s{sT3}, s{sT3}, {SPARE}\nv_add_u32 v202, s{sT3}, v{vLL}')
        e(f's_lshl_b32 s{sT3}, s{sT2}, 14\ns_add_u32 s{sT3}, s{sT3}, {VBASE}\nv_add_u32 v203, s{sT3}, v{vLL}')
        e(f's_lshl_b32 s{sT3}, s{sw}, 13\ns_add_u32 s{sT3}, s{sT3}, {SPARE}\nv_add_u32 v200, s{sT3}, v{vLL}\nv_add_u32 v201, s{sRing}, v{vLL}')
        for src in range(4):
            for p in range(2):
                for g in range(4):
                    e.ds(f'ds_read_b128 {V(Q+32*g+4*(2*src+p),4)}, v{200+src} offset:{(g*2+p)*1024}', 'qr')
        e.waitds0()
        e('s_barrier')
        for it in self.kv_dma('V', 0): e.item(it)

    def kv_dma(self, kind, slot, tag=None):
        srd_, vreg, base = (sK, DK, KSLOT[slot]) if kind == 'K' else (sV, DV, VBASE + KSLOT[slot])
        tag = tag or f'{kind}{slot}'
        it = []
        for h in range(2):
            it.append(f's_add_u32 m0, s{sW4k}, {base + h*16384}')
            it.append('s_nop 0')
            for i in range(4):
                it.append(('vm', f'buffer_load_dwordx4 v{vreg}, s[{srd_}:{srd_+3}], s{(SO0, SO1)[h]+i} offen offset:{i*1024} lds', tag))
        it.append(f'v_add_u32 v{vreg}, 0x8000, v{vreg}')
        it.append(f'v_and_b32 v{vreg}, 0xfffff, v{vreg}')
        return it

    def reads(self, kind, slot, i):
        f = FR + 4 * (i % 4)
        if kind == 'K':
            t, s = divmod(i, 8); u, b = divmod(s, 2)
            return [('ds', f'ds_read_b128 {V(f,4)}, v{KA+b} offset:{KSLOT[slot]+u*4096+t*2048}', f'K{i}')]
        u, k = divmod(i, 4)
        return [('ds', f'ds_read_b64_tr_b16 {V(f+2*tt,2)}, v{VA+k} offset:{KSLOT[slot]+u*4096+tt*2048}', f'V{i}') for tt in range(2)]

    def mfma(self, kind, i, g, par, first):
        f = FR + 4 * (i % 4)
        if kind == 'K':
            t, s = divmod(i, 8); d = Sr + 16 * t + 4 * g
            c = V(d, 4) if s else ('0' if first else V(NM + 4 * g, 4))
            return f'v_mfma_f32_16x16x32_bf16 {V(d,4)}, {V(f,4)}, {V(Q+32*g+4*s,4)}, {c}'
        d = 16 * i + 4 * g
        c = '0' if first else A(d, 4)
        return f'v_mfma_f32_16x16x32_bf16 {A(d,4)}, {V(f,4)}, {V(P+16*par+4*g,4)}, {c}'

    def softmax_items(self, pn, t0slot, t1slot):
        it = []
        pool = [TM, TM + 2, XT, XT + 2, XT + 4, XT + 6]
        users = {}; lastadd = {}
        def add(txt, cost, early, deps=(), gdeps=()):
            it.append(dict(txt=txt, cost=cost, early=early, deps=list(deps), gdeps=list(gdeps))); return len(it) - 1
        for q in range(16):
            t, r = divmod(q, 8); g, h = divmod(r, 2)
            s = Sr + 16 * t + 4 * g + 2 * h; tm = pool[q % len(pool)]
            early = (t0slot if t == 0 else t1slot) + g
            war = users.get(tm, [])
            x0 = add(f'v_exp_f32 v{tm}, v{s}', 8, early, war)
            x1 = add(f'v_exp_f32 v{tm+1}, v{s+1}', 8, early, war)
            c = add(f'v_cvt_pk_bf16_f32 v{P+16*pn+4*g+2*t+h}, v{tm}, v{tm+1}', 4, early, (), [x0, x1])
            if t == 0 and h == 0:
                a1 = add(f'v_add_f32 v{PS+g}, v{tm}, v{tm+1}', 4, early, (), [x0, x1]); us = [c, a1]
            else:
                a0 = add(f'v_add_f32 v{PS+g}, v{PS+g}, v{tm}', 4, early, [lastadd[g]], [x0])
                a1 = add(f'v_add_f32 v{PS+g}, v{PS+g}, v{tm+1}', 4, early, [a0], [x1]); us = [c, a0, a1]
            lastadd[g] = a1; users[tm] = us
        m0 = add(f'v_max3_f32 v{CK}, v{PS}, v{PS+1}, v{PS+2}', 4, 0, [lastadd[0], lastadd[1], lastadd[2]])
        m1 = add(f'v_max_f32 v{CK}, v{CK}, v{PS+3}', 4, 0, [m0, lastadd[3]])
        add(f'v_cmp_nge_f32 vcc, s{sTHR}, v{CK}', 4, 0, [m1])
        return it

    def run_phases(self, phases, valu, ladd=True):
        e = self.e
        n = 64 * len(phases)
        gaps = [[] for _ in range(n)]; used = [0] * n
        def put(s, it, c, front=False):
            if front: gaps[s].insert(0, it)
            else: gaps[s].append(it)
            used[s] += c
        wp = self.waitper
        for pi, ph in enumerate(phases):
            o = 64 * pi
            for i in range(16):
                j = i + 4
                rd = self.reads(ph['kind'], ph['slot'], j) if j < 16 else (self.reads(ph['next'][0], ph['next'][1], j - 16) if ph['next'] else [])
                for r in rd: put(o + 4 * i + 3, r, 4)
                if i + 1 < 16 and (i + 1) % wp == 0:
                    w = ('wds', f"{ph['kind']}{min(15, i + wp)}")
                    put(o + 4 * i + (3 if len(rd) < 2 else 2), w, 4)
            dm = [x for x in ph['dma'] if x != 's_nop 0']
            k = 0
            for x in dm:
                if isinstance(x, tuple): put(o + 4 * k + 1, x, 8); k += 1
                else: put(o + 4 * k, x, 4)
        if ladd:
            for g in range(4): put(4 * g + 2, f'v_add_f32 v{LS+g}, v{LS+g}, v{PS+g}', 4, True)
        for pi in range(len(phases)): used[64 * pi + 63] += 8
        place = [None] * len(valu)
        over = 0
        for s in range(n):
            prog = True
            while prog:
                prog = False
                for k, v in enumerate(valu):
                    if place[k] is not None or v['early'] > s: continue
                    if any(place[d] is None for d in v['deps']) or any(place[d] is None or place[d] >= s for d in v['gdeps']): continue
                    left = sum(x['cost'] for kk, x in enumerate(valu) if place[kk] is None)
                    room = sum(max(0, 8 - used[z]) for z in range(s, n - 1))
                    cap = 8 if left <= room else 12
                    if used[s] + v['cost'] > cap: continue
                    place[k] = s; over += max(0, used[s] + v['cost'] - 8) - max(0, used[s] - 8)
                    if gaps[s] and isinstance(gaps[s][-1], tuple) and gaps[s][-1][0] == 'wds':
                        gaps[s].insert(len(gaps[s]) - 1, v['txt']); used[s] += v['cost']
                    else: put(s, v['txt'], v['cost'])
                    prog = True; break
        assert all(p is not None for p in place), [v['txt'] for v, p in zip(valu, place) if p is None]
        if valu: print('sched: overflow cycles', over, 'last valu slot', max(place))
        for pi, ph in enumerate(phases):
            for x in ph.get('pre', []): e.item(x)
            e.waitvm(*ph['wait'])
            e('s_barrier')
            if ph.get('fresh'):
                for i in range(4):
                    for it in self.reads(ph['kind'], ph['slot'], i): e.item(it)
            e.waitds(f"{ph['kind']}{wp-1}")
            for k in range(64):
                e(self.mfma(ph['kind'], k // 4, k % 4, ph['par'], ph['first']))
                for x in gaps[64 * pi + k]: e.item(x)

    def check(self, pn):
        k = self.nstub; self.nstub += 1
        self.e(f's_cbranch_vccnz L_stub{k}\nL_back{k}:')
        self.stubs.append(f'L_stub{k}:\ns_call_b64 s[{sRet}:{sRet+1}], L_rare{pn}\ns_branch L_back{k}')

    def iteration(self, par, kdma, first=False, vdma=True, wait_a=None, wait_b=None, nextA=True):
        pa = dict(kind='K', slot=1 - par, par=par, first=False, next=('V', par),
                  dma=self.kv_dma('V', 1 - par, 'Vn') if vdma else [], wait=wait_a or ['Vn'])
        pb = dict(kind='V', slot=par, par=par, first=first, next=('K', par) if nextA else None,
                  dma=kdma, wait=wait_b or ['Kn'])
        self.run_phases([pa, pb], self.softmax_items(1 - par, 34, 66), ladd=not first)
        self.check(1 - par)

    def resoftmax(self, pn, first):
        e = self.e
        D = XT; T = XT + 4
        for g in range(4):
            s0 = Sr + 4 * g; s1 = Sr + 16 + 4 * g
            e(f'v_max3_f32 v{D+g}, v{s0}, v{s0+1}, v{s0+2}\nv_max3_f32 v{D+g}, v{D+g}, v{s0+3}, v{s1}')
            e(f'v_max3_f32 v{D+g}, v{D+g}, v{s1+1}, v{s1+2}\nv_max_f32 v{D+g}, v{D+g}, v{s1+3}')
        xop_grp_multi(e, [D + g for g in range(4)], [T + g for g in range(4)], 'v_max_f32')
        if self.bias:
            for g in range(4): e(f'v_add_f32 v{D+g}, {f2u(self.bias)}, v{D+g}')
        if first:
            for g in range(4):
                for r in range(4): e(f'v_sub_f32 v{NM+4*g+r}, 0, v{D+g}')
        else:
            for g in range(4): e(f'v_max_f32 v{D+g}, 0, v{D+g}')
            for g in range(4):
                for r in range(4): e(f'v_sub_f32 v{NM+4*g+r}, v{NM+4*g+r}, v{D+g}')
            for g in range(4): e(f'v_exp_f32 v{T+g}, -v{D+g}')
            e('s_nop 0')
            for g in range(4): e(f'v_mul_f32 v{LS+g}, v{LS+g}, v{T+g}')
            for db in range(16):
                for g in range(4):
                    a = 16 * db + 4 * g
                    for r in range(4): e(f'v_accvgpr_read_b32 v{TM+r}, a{a+r}')
                    for r in range(4): e(f'v_mul_f32 v{TM+r}, v{TM+r}, v{T+g}')
                    for r in range(4): e(f'v_accvgpr_write_b32 a{a+r}, v{TM+r}')
        for g in range(4):
            for t in range(2):
                s = Sr + 16 * t + 4 * g
                for r in range(4): e(f'v_sub_f32 v{TM+r}, v{s+r}, v{D+g}')
                for r in range(4): e(f'v_exp_f32 v{TM+r}, v{TM+r}')
                e('s_nop 0')
                e(f'v_cvt_pk_bf16_f32 v{P+16*pn+4*g+2*t}, v{TM}, v{TM+1}\nv_cvt_pk_bf16_f32 v{P+16*pn+4*g+2*t+1}, v{TM+2}, v{TM+3}')
                if t == 0: e(f'v_add_f32 v{PS+g}, v{TM}, v{TM+1}')
                else: e(f'v_add_f32 v{PS+g}, v{PS+g}, v{TM}\nv_add_f32 v{PS+g}, v{PS+g}, v{TM+1}')
                e(f'v_add_f32 v{PS+g}, v{PS+g}, v{TM+2}\nv_add_f32 v{PS+g}, v{PS+g}, v{TM+3}')

    def wo_dma(self, n, tag):
        base = (n % 5) * 32768
        it = []
        for u in range(7):
            it.append(f's_add_u32 m0, s{sT1}, {base + u*4096 - u*128}')
            it.append('s_nop 0')
            it.append(('vm', f'buffer_load_dwordx4 v{XT+7}, s[{sWo}:{sWo+3}], s{sWoK} offen offset:{u*128} lds', tag))
        it.append(f's_add_u32 s{sWoK}, s{sWoK}, {32*896}')
        return it

    def mainloop(self):
        e = self.e
        for i in range(3):
            for it in self.reads('K', 0, i): e.item(it)
        ph = dict(kind='K', slot=0, par=0, first=True, next=None, dma=[], wait=[])
        e.waitds('K0')
        for k in range(64):
            i, g = divmod(k, 4)
            if g == 0: e.waitds(f'K{i}')
            e(self.mfma('K', i, g, 0, True))
            if g == 0 and i + 3 < 16:
                for it in self.reads('K', 0, i + 3): e.item(it)
        e('s_barrier')
        for it in self.kv_dma('K', 0, 'Kn'): e.item(it)
        for i in range(4):
            for it in self.reads('K', 1, i): e.item(it)
        self.resoftmax(0, True)
        for g in range(4): e(f'v_mov_b32 v{LS+g}, v{PS+g}')
        if self.dbg == 's': self.dump([('v', Sr + 4 * i) for i in range(8)] + [('v', P + 4 * i) for i in range(4)] + [('v', NM + 4 * i) for i in range(4)] + [('v', LS)])
        self.iteration(0, self.kv_dma('K', 1, 'Kn'), first=True, wait_a=['V0'])
        e(f's_mov_b32 s{scnt}, 14')
        st = (list(e.vmq), list(e.dsq))
        e('.p2align 6\nL_k2_loop:')
        self.iteration(1, self.kv_dma('K', 0, 'Kn'))
        self.iteration(0, self.kv_dma('K', 1, 'Kn'))
        assert st == (e.vmq, e.dsq), (st, e.vmq, e.dsq)
        e(f's_sub_u32 s{scnt}, s{scnt}, 1\ns_cmp_lg_u32 s{scnt}, 0\ns_cbranch_scc1 L_k2_loop')
        e(f'v_mbcnt_lo_u32_b32 v{XT+4}, -1, 0\nv_mbcnt_hi_u32_b32 v{XT+4}, -1, v{XT+4}')
        e(f'v_lshrrev_b32 v{XT+5}, 3, v{XT+4}\nv_and_b32 v{XT+6}, 0xf0, v{DK}')
        e(f's_lshl_b32 s{sT1}, s{sw}, 3\nv_add_u32 v{XT+5}, s{sT1}, v{XT+5}\nv_mul_u32_u24 v{XT+5}, 896, v{XT+5}')
        e(f'v_and_b32 v{XT+6}, 0x70, v{XT+6}\nv_add_u32 v253, v{XT+5}, v{XT+6}\ns_lshl_b32 s{sT1}, s{sw}, 10\ns_mov_b32 s{sWoK}, 0')
        self.WOD = 253
        wo = lambda n: [x if not isinstance(x, tuple) else (x[0], x[1].replace(f'v{XT+7},', 'v253,'), x[2]) for x in self.wo_dma(n, f'wo{n}')]
        self.wo = wo
        self.iteration(1, wo(0))
        self.iteration(0, wo(1), wait_b=['Kn'], nextA=False)
        pb = dict(kind='V', slot=1, par=1, first=False, next=None, dma=[], wait=['Vn'], fresh=True)
        self.run_phases([pb], [], ladd=True)

    def epilogue(self):
        e = self.e
        LL, PA, T = 128, 129, 132
        WOWN, WOTH = 140, 144
        e(f'v_mbcnt_lo_u32_b32 v{LL}, -1, 0\nv_mbcnt_hi_u32_b32 v{LL}, -1, v{LL}\nv_lshlrev_b32 v{LL+2}, 3, v{LL}\nv_lshlrev_b32 v{LL}, 4, v{LL}')
        xop_grp_multi(e, [LS + g for g in range(4)], [T + g for g in range(4)], 'v_add_f32')
        e(f's_lshl_b32 s{sT2}, s{sw}, 11\ns_add_u32 s{sT2}, s{sT2}, {SPARE}\nv_add_u32 v{LL+3}, s{sT2}, v{LL+2}')
        e(f's_xor_b32 s{sT2}, s{sT2}, 4096\nv_add_u32 v{LL+2}, s{sT2}, v{LL+2}')
        for g in range(4):
            e(f'v_mov_b32 v{T+2*g}, v{NM+4*g}\nv_mov_b32 v{T+2*g+1}, v{LS+g}')
            e.ds(f'ds_write_b64 v{LL+3}, {V(T+2*g,2)} offset:{g*512}', 'mlw')
        e.waitds0()
        e('s_barrier')
        ML = 148
        for g in range(4): e.ds(f'ds_read_b64 {V(ML+2*g,2)}, v{LL+2} offset:{g*512}', 'mlr')
        e(f'v_add_u32 v{PA}, s{sRing}, v{LL}\ns_xor_b32 s{sT2}, s{sRing}, 32768\nv_add_u32 v{PA+1}, s{sT2}, v{LL}')
        def owrite(r):
            for x in range(16):
                e.ds(f'ds_write_b128 v{PA}, {A(128+64*r+4*x,4)} offset:{x*1024}', 'ow')
        owrite(0)
        e.waitds('mlr')
        for g in range(4):
            e(f'v_min_f32 v{T}, v{NM+4*g}, v{ML+2*g}\nv_sub_f32 v{T+1}, v{T}, v{NM+4*g}\nv_sub_f32 v{T+2}, v{T}, v{ML+2*g}')
            e(f'v_exp_f32 v{T+1}, v{T+1}\nv_exp_f32 v{T+2}, v{T+2}\ns_nop 0')
            e(f'v_mul_f32 v{T+3}, v{T+1}, v{LS+g}\nv_fmac_f32 v{T+3}, v{T+2}, v{ML+2*g+1}\nv_rcp_f32 v{T+3}, v{T+3}\ns_nop 0')
            e(f'v_mul_f32 v{WOWN+g}, v{T+1}, v{T+3}\nv_mul_f32 v{WOTH+g}, v{T+2}, v{T+3}')
        OWN = 64
        PK = 160
        e(f's_lshl_b32 s{sT2}, s{sw}, 13\ns_add_u32 s{sT3}, s{sT2}, {SPARE}\nv_add_u32 v156, s{sT3}, v{LL}\ns_add_u32 s{sT3}, s{sT2}, {VBASE}\nv_add_u32 v157, s{sT3}, v{LL}')
        for r in range(2):
            for x in range(64): e(f'v_accvgpr_read_b32 v{OWN+x}, a{64*r+x}')
            for x in range(64): e(f'v_mul_f32 v{OWN+x}, v{OWN+x}, v{WOWN+(x//4)%4}')
            e.waitds0()
            e('s_barrier')
            for x in range(16): e.ds(f'ds_read_b128 {V(4*x,4)}, v{PA+1} offset:{x*1024}', f'or{x}')
            for x in range(16):
                e.waitds(f'or{x}')
                for y in range(4): e(f'v_fmac_f32 v{OWN+4*x+y}, v{4*x+y}, v{WOTH+x%4}')
            e('s_barrier')
            if r == 0: owrite(1)
            for x in range(16):
                db, g = divmod(x, 4)
                pk = PK + ((db >> 1) * 4 + g) * 4 + (db & 1) * 2
                e(f'v_cvt_pk_bf16_f32 v{pk}, v{OWN+4*x}, v{OWN+4*x+1}\nv_cvt_pk_bf16_f32 v{pk+1}, v{OWN+4*x+2}, v{OWN+4*x+3}')
            for x in range(8): e.ds(f'ds_write_b128 v{156+r}, {V(PK+4*x,4)} offset:{x*1024}', 'obw')
        e.waitds0()
        e('s_barrier')
        e(f's_lshr_b32 s{sT2}, s{sw}, 1\ns_lshl_b32 s{sT2}, s{sT2}, 11\ns_add_u32 s{sT3}, s{sT2}, {SPARE}\nv_add_u32 v156, s{sT3}, v{LL}\ns_add_u32 s{sT3}, s{sT2}, {VBASE}\nv_add_u32 v157, s{sT3}, v{LL}')
        for ks in range(16):
            hd, kh, r, qq = ks >> 3, (ks >> 2) & 1, (ks >> 1) & 1, ks & 1
            for gg in range(2):
                e.ds(f'ds_read_b128 {A((ks*2+gg)*4,4)}, v{156+r} offset:{(hd+2*kh)*8192+(qq*4+gg)*1024}', 'obr')
        WA = 164
        e(f's_and_b32 s{sT2}, s{sw}, 1\ns_lshr_b32 s{sT0}, s{sw}, 1\ns_lshl_b32 s{sT0}, s{sT0}, 14\ns_add_u32 s{sT0}, s{sT0}, {VBASE}')
        e(f's_cmp_eq_u32 s{sT2}, 1\ns_cselect_b64 s[98:99], -1, 0')
        for k in range(4):
            e(f'v_subrev_u32 v{T}, s{sT0}, v{VA+k}\nv_subrev_u32 v{T+1}, s{sT0}, v{VA+(k+2)%4}\nv_add_u32 v{T+1}, {(3 if k < 2 else 4)*4096}, v{T+1}')
            e(f'v_cndmask_b32 v{WA+k}, v{T}, v{T+1}, s[98:99]\nv_add_u32 v{WA+4+k}, 0x10000, v{WA+k}\nv_add_u32 v{WA+8+k}, 0x20000, v{WA+k}')
        e.waitds0()
        e.waitvm('wo0', 'wo1')
        e('s_barrier')
        for n in (2, 3):
            for it in self.wo(n): e.item(it)
        NF = 8; WF = 176
        def rd(n, i):
            sl = n % 5; f = WF + 4 * ((n * 14 + i) % NF)
            return [('ds', f'ds_read_b64_tr_b16 {V(f+2*tt,2)}, v{WA+4*(sl//2)+i%4} offset:{(sl&1)*32768+(i//4)*4096+tt*2048}', f'a{n}_{i}') for tt in range(2)]
        PD = 6
        for i in range(PD):
            for it in rd(0, i): e.item(it)
        for n in range(16):
            if n > 0:
                if n + 1 < 16: e.waitvm(f'wo{n+1}')
                e('s_barrier')
            dl = [x for x in self.wo(n + 4) if x != 's_nop 0'] if n + 4 < 16 else []
            for i in range(14):
                e.waitds(f'a{n}_{i}')
                f = WF + 4 * ((n * 14 + i) % NF)
                j = i + PD
                nxt = rd(n, j) if j < 14 else (rd(n + 1, j - 14) if n + 1 < 16 else [])
                for gg in range(2):
                    d = (i * 2 + gg) * 4
                    c = '0' if n == 0 else V(d, 4)
                    e(f'v_mfma_f32_16x16x32_bf16 {V(d,4)}, {V(f,4)}, {A((n*2+gg)*4,4)}, {c}')
                    if gg < len(nxt): e.item(nxt[gg])
                    if gg == 1 and dl:
                        e.item(dl.pop(0))
                        if dl and not isinstance(dl[0], tuple) and len(dl) == 1: e.item(dl.pop(0))
            assert not dl, dl
        e('s_nop 7')
        e(f's_lshr_b32 s{sT2}, s{sw}, 1\ns_lshl_b32 s{sT2}, s{sT2}, 1\ns_lshl_b32 s{sT3}, s{stb}, 2\ns_add_u32 s{sT2}, s{sT2}, s{sT3}\ns_mul_i32 s{sT2}, s{sT2}, 14336')
        e(f's_and_b32 s{sT3}, s{sw}, 1\ns_mul_i32 s{sT3}, s{sT3}, 7168\ns_add_u32 s{sT2}, s{sT2}, s{sT3}\nv_add_u32 v{PA}, s{sT2}, v{LL}\nv_add_u32 v{PA+1}, 14336, v{PA}')
        e(f's_mov_b32 s{sT0}, 4096')
        for p in range(7):
            for gg in range(2):
                a0 = (4 * p + gg) * 4; a1 = (4 * p + 2 + gg) * 4; o = WF + 4 * (2 * p + gg)
                e(f'v_cvt_pk_bf16_f32 v{o}, v{a0}, v{a0+1}\nv_cvt_pk_bf16_f32 v{o+1}, v{a0+2}, v{a0+3}')
                e(f'v_cvt_pk_bf16_f32 v{o+2}, v{a1}, v{a1+1}\nv_cvt_pk_bf16_f32 v{o+3}, v{a1+2}, v{a1+3}')
                so = '0' if p < 4 else f's{sT0}'
                e.vm(f'buffer_store_dwordx4 {V(o,4)}, v{PA+gg}, s[{sPart}:{sPart+3}], {so} offen offset:{(p%4)*1024}', f'st{2*p+gg}')
        e.waitvm0()
        e('L_k2_done:\ns_endpgm')
        for s in self.stubs: e(s)
        for pn in range(2):
            e(f'L_rare{pn}:\ns_nop 7')
            self.resoftmax(pn, False)
            e(f's_nop 1\ns_setpc_b64 s[{sRet}:{sRet+1}]')

    def dump(self, regs, kind='v'):
        e = self.e
        e('s_waitcnt vmcnt(0) lgkmcnt(0)\ns_nop 7\ns_nop 7')
        e(f's_lshl_b32 s{sT2}, s2, 2\ns_add_u32 s{sT2}, s{sT2}, s{sw}\ns_lshl_b32 s{sT2}, s{sT2}, 16\ns_add_u32 s{sT2}, s{sT2}, {DBG}')
        srd_off(e, sDst, 86, 87, f's{sT2}', 65536)
        e('v_mbcnt_lo_u32_b32 v255, -1, 0\nv_mbcnt_hi_u32_b32 v255, -1, v255\nv_lshlrev_b32 v255, 4, v255')
        for i, (k, r) in enumerate(regs):
            e(f's_mov_b32 s{sT2}, {i*1024}')
            e(f'buffer_store_dwordx4 {k}[{r}:{r+3}], v255, s[{sDst}:{sDst+3}], s{sT2} offen')
        e('s_waitcnt vmcnt(0)\ns_endpgm')

    def gen(self):
        self.setup(); self.prologue()
        if self.dbg == 'q': self.dump([('v', 4 * i) for i in range(32)])
        if self.dbg == 'h': self.dump([('a', 4 * i) for i in range(56)])
        self.mainloop()
        if self.dbg == 'o': self.dump([('a', 4 * i) for i in range(32)] + [('v', NM + 4 * i) for i in range(4)] + [('v', LS)])
        self.epilogue()
        return self.e, descriptor(self.name, 512, 256), f'; @launch kernel={self.name} grid=(256,1,1) block=(256,1,1) lds=163840'
```

```python
from asmlib import *
from common import *

GC0 = -2.0 * 0.7978845608028654 * LOG2E
GC1 = GC0 * 0.044715

def gelu(e, regs, tmp, s0, s1):
    for r, t in zip(regs, tmp): e(f'v_mul_f32 v{t}, v{r}, v{r}')
    for r, t in zip(regs, tmp): e(f'v_fma_f32 v{t}, v{t}, s{s1}, v{s0}' if False else f'v_mul_f32 v{t}, s{s1}, v{t}')
    for r, t in zip(regs, tmp): e(f'v_add_f32 v{t}, s{s0}, v{t}')
    for r, t in zip(regs, tmp): e(f'v_mul_f32 v{t}, v{t}, v{r}')
    for r, t in zip(regs, tmp): e(f'v_exp_f32 v{t}, v{t}')
    if len(regs) < 2: e('s_nop 0')
    for r, t in zip(regs, tmp): e(f'v_add_f32 v{t}, 1.0, v{t}')
    for r, t in zip(regs, tmp): e(f'v_rcp_f32 v{t}, v{t}')
    if len(regs) < 2: e('s_nop 0')
    for r, t in zip(regs, tmp): e(f'v_mul_f32 v{r}, v{r}, v{t}')

def unpack(e, dst, src, n):
    for q in range(n):
        e(f'v_lshlrev_b32 v{dst+2*q}, 16, v{src+q}\nv_and_b32 v{dst+2*q+1}, 0xffff0000, v{src+q}')
def pack(e, dst, src, n):
    for q in range(n): e(f'v_cvt_pk_bf16_f32 v{dst+q}, v{src+2*q}, v{src+2*q+1}')

def wave_id(e, sw):
    e(f'v_lshrrev_b32 v1, 6, v0\nv_and_b32 v0, 63, v0\ns_nop 0\nv_readfirstlane_b32 s{sw}, v1')

def stats_exchange(e, vals, nval, T, vSW, vSR, off, nw, RB):
    e(f'v_pk_add_f32 {V(T,2)}, {V(vals,2)}, {V(vals+2,2)}\nv_pk_mul_f32 {V(T+2,2)}, {V(vals,2)}, {V(vals,2)}')
    e(f'v_pk_fma_f32 {V(T+2,2)}, {V(vals+2,2)}, {V(vals+2,2)}, {V(T+2,2)}')
    for i in range(2, nval // 2):
        e(f'v_pk_add_f32 {V(T,2)}, {V(T,2)}, {V(vals+2*i,2)}\nv_pk_fma_f32 {V(T+2,2)}, {V(vals+2*i,2)}, {V(vals+2*i,2)}, {V(T+2,2)}')
    e(f'v_add_f32 v{T}, v{T}, v{T+1}\nv_add_f32 v{T+1}, v{T+2}, v{T+3}')
    xop_grp_multi(e, [T, T + 1], [T + 2, T + 3], 'v_add_f32')
    if nw > 1:
        e.ds(f'ds_write_b64 v{vSW}, {V(T,2)} offset:{off}', 'sw')
        e.waitds0()
        e('s_barrier')
        for w in range(nw): e.ds(f'ds_read_b64 {V(RB+2*w,2)}, v{vSR} offset:{off+w*512}', 'sr')
        e.waitds0()
        e(f'v_pk_add_f32 {V(T,2)}, {V(RB,2)}, {V(RB+2,2)}')
        for w in range(2, nw): e(f'v_pk_add_f32 {V(T,2)}, {V(T,2)}, {V(RB+2*w,2)}')
    e(f'v_mul_f32 v{T+8}, {f2u(-1.0/448)}, v{T}\nv_mov_b32 v{T+9}, {f2u(1e-5)}\nv_fmac_f32 v{T+9}, {f2u(1.0/448)}, v{T+1}')
    e(f'v_fma_f32 v{T+9}, -v{T+8}, v{T+8}, v{T+9}\nv_max_f32 v{T+9}, {f2u(1e-5)}, v{T+9}\nv_rsq_f32 v{T+10}, v{T+9}\ns_nop 0')

def gen_k3(name='k3_mix1_kernel'):
    e = Emit(); header(e, name)
    sw, stg, snh = 40, 41, 42
    sP, sX, sM, sW, sO, sU = 4, 8, 12, 16, 20, 24
    e('s_cmp_ge_u32 s2, 256\ns_cbranch_scc1 L_k3_done')
    e(f's_load_dwordx2 s[60:61], s[0:1], {A_X}\ns_load_dwordx2 s[62:63], s[0:1], {A_WS}')
    wave_id(e, sw)
    e(f's_bfe_u32 s{snh}, s2, 0x10003\ns_lshr_b32 s{stg}, s2, 4\ns_lshl_b32 s{stg}, s{stg}, 3\ns_and_b32 s3, s2, 7\ns_or_b32 s{stg}, s{stg}, s3')
    LL, XA, MA, XW, SW_, SR_, AW = 2, 3, 4, 5, 6, 7, 8
    e(f'v_lshlrev_b32 v{LL}, 4, v0')
    e(f's_mul_i32 s43, s{stg}, 14\ns_lshl_b32 s44, s{sw}, 1\ns_add_u32 s43, s43, s44\ns_lshl_b32 s43, s43, 10')
    e(f'v_lshrrev_b32 v10, 2, v0\nv_and_b32 v11, 3, v0\ns_lshl_b32 s44, s{stg}, 4\nv_add_u32 v12, s44, v10\nv_mul_u32_u24 v12, 896, v12')
    e(f's_lshl_b32 s44, s{sw}, 7\nv_lshl_add_u32 v12, v11, 4, v12\nv_add_u32 v{XA}, s44, v12')
    e(f'v_lshrrev_b32 v12, 4, v0\nv_lshlrev_b32 v12, 4, v12\nv_add_u32 v{MA}, s44, v12')
    XR = 16384; ST = XR + 14336
    e(f'v_and_b32 v12, 1, v11\nv_lshl_add_u32 v12, v12, 5, v10\nv_lshlrev_b32 v12, 4, v12\nv_lshrrev_b32 v13, 1, v11\nv_lshl_add_u32 v12, v13, 3, v12')
    e(f's_lshl_b32 s45, s{sw}, 11\ns_add_u32 s46, s45, {XR}\nv_add_u32 v{XW}, s46, v12\nv_add_u32 v9, s46, v{LL}')
    e(f'v_lshlrev_b32 v{SR_}, 3, v0\nv_add_u32 v{SR_}, {ST}, v{SR_}\ns_lshl_b32 s46, s{sw}, 9\nv_add_u32 v{SW_}, s46, v{SR_}')
    e(f'v_add_u32 v{AW}, s45, v{LL}')
    e('s_waitcnt lgkmcnt(0)')
    srd_off(e, sP, 62, 63, PART, 8 * FB)
    srd(e, sX, 60, 61, FB)
    srd_off(e, sM, 62, 63, MODF, 6 * 896)
    srd_off(e, sW, 62, 63, W1F, 448 * 896)
    e(f's_mul_i32 s46, s{snh}, {HH-X2}\ns_add_u32 s46, s46, {X2}')
    srd_off(e, sO, 62, 63, 's46', FB)
    srd_off(e, sU, 62, 63, UU, FB)
    XRAW, PR, PM = 12, 20, 84
    for k in range(2): e.vm(f'buffer_load_dwordx4 {V(XRAW+4*k,4)}, v{XA}, s[{sX}:{sX+3}], 0 offen offset:{k*64}', 'x')
    for p in range(8):
        if p: e(f's_add_u32 s43, s43, {FB}')
        for k in range(2): e.vm(f'buffer_load_dwordx4 {V(PR+8*p+4*k,4)}, v{LL}, s[{sP}:{sP+3}], s43 offen offset:{k*1024}', f'p{p}')
    for j, which in enumerate((2, 3, 4)):
        for k in range(2): e.vm(f'buffer_load_dwordx4 {V(PM+8*j+4*k,4)}, v{MA}, s[{sM}:{sM+3}], 0 offen offset:{which*896+k*64}', 'm')
    e(f's_mul_i32 s44, s{snh}, 14\ns_lshl_b32 s45, s{sw}, 1\ns_add_u32 s44, s44, s45\ns_mul_i32 s44, s44, 14336')
    e('s_add_u32 s45, s44, 14336')
    for ks in range(14):
        if ks and ks % 4 == 0: e('s_add_u32 s44, s44, 4096\ns_add_u32 s45, s45, 4096')
        for b in range(2):
            e.vm(f'buffer_load_dwordx4 {A(4*(b*14+ks),4)}, v{LL}, s[{sW}:{sW+3}], s{44+b} offen offset:{(ks%4)*1024}', f'w{b*14+ks}')
    e(f's_mov_b32 s50, {f2u(GC0)}\ns_mov_b32 s51, {f2u(GC1)}')
    e.waitvm('x')
    for k in range(2):
        e.ds(f'ds_write_b64 v{XW}, {V(XRAW+4*k,2)} offset:{k*1024}', 'xw')
        e.ds(f'ds_write_b64 v{XW}, {V(XRAW+4*k+2,2)} offset:{k*1024+256}', 'xw')
    e.waitds0()
    for k in range(2): e.ds(f'ds_read_b128 {V(XRAW+4*k,4)}, v9 offset:{k*1024}', 'xr')
    AC, T = 108, 124
    assert T + 16 <= 144
    e.waitvm('p0'); unpack(e, AC, PR, 8)
    for p in range(1, 8):
        e.waitvm(f'p{p}'); unpack(e, T, PR + 8 * p, 8)
        for i in range(8): e(f'v_pk_add_f32 {V(AC+2*i,2)}, {V(AC+2*i,2)}, {V(T+2*i,2)}')
    e.waitvm('m'); e.waitds0()
    G = PR; XV = PR + 16; SB = PR + 32; CB = PR + 48
    unpack(e, G, PM, 8); unpack(e, XV, XRAW, 8); unpack(e, SB, PM + 8, 8); unpack(e, CB, PM + 16, 8)
    for i in range(8): e(f'v_pk_fma_f32 {V(AC+2*i,2)}, {V(AC+2*i,2)}, {V(G+2*i,2)}, {V(XV+2*i,2)}')
    X2P = XRAW; HP = PM
    pack(e, X2P, AC, 8); unpack(e, AC, X2P, 8)
    stats_exchange(e, AC, 16, T, SW_, SR_, 0, 7, PR)
    for i in range(8): e(f'v_pk_add_f32 {V(AC+2*i,2)}, {V(AC+2*i,2)}, {V(T+8,2)} op_sel_hi:[1,0]')
    for i in range(8): e(f'v_pk_mul_f32 {V(AC+2*i,2)}, {V(AC+2*i,2)}, {V(T+10,2)} op_sel_hi:[1,0]')
    for i in range(8): e(f'v_pk_fma_f32 {V(AC+2*i,2)}, {V(AC+2*i,2)}, {V(CB+2*i,2)}, {V(SB+2*i,2)}')
    pack(e, HP, AC, 8); unpack(e, AC, HP, 8)
    stats_exchange(e, AC, 16, T, SW_, SR_, 3584, 7, PR)
    for i in range(8): e(f'v_pk_add_f32 {V(AC+2*i,2)}, {V(AC+2*i,2)}, {V(T+8,2)} op_sel_hi:[1,0]')
    for i in range(8): e(f'v_pk_mul_f32 {V(AC+2*i,2)}, {V(AC+2*i,2)}, {V(T+10,2)} op_sel_hi:[1,0]')
    AP = PM + 8
    pack(e, AP, AC, 8)
    for k in range(2): e.ds(f'ds_write_b128 v{AW}, {V(AP+4*k,4)} offset:{k*1024}', 'aw')
    e(f's_cmp_eq_u32 s{snh}, 0\ns_cselect_b64 vcc, -1, 0')
    for i in range(8): e(f'v_cndmask_b32 v{X2P+i}, v{HP+i}, v{X2P+i}, vcc')
    e(f's_sub_u32 s43, s43, {7*FB}')
    for k in range(2): e.vm(f'buffer_store_dwordx4 {V(X2P+4*k,4)}, v{LL}, s[{sO}:{sO+3}], s43 offen offset:{k*1024}', 'st')
    e.waitds0()
    e('s_barrier')
    B = PR
    for ks in range(14): e.ds(f'ds_read_b128 {V(B+4*ks,4)}, v{LL} offset:{ks*1024}', f'b{ks}')
    for ks in range(14):
        e.waitds(f'b{ks}')
        for b in range(2):
            e.waitvm(f'w{b*14+ks}')
            c = '0' if ks == 0 else V(AC + 4 * b, 4)
            e(f'v_mfma_f32_16x16x32_bf16 {V(AC+4*b,4)}, {A(4*(b*14+ks),4)}, {V(B+4*ks,4)}, {c}')
    e(f's_mul_i32 s44, s{stg}, 14\ns_mul_i32 s45, s{snh}, 7\ns_add_u32 s44, s44, s45\ns_add_u32 s44, s44, s{sw}\ns_lshl_b32 s44, s44, 10\ns_nop 3')
    gelu(e, list(range(AC, AC + 8)), list(range(T, T + 8)), 50, 51)
    pack(e, T + 8, AC, 4)
    e(f'buffer_store_dwordx4 {V(T+8,4)}, v{LL}, s[{sU}:{sU+3}], s44 offen\ns_waitcnt vmcnt(0)')
    e('L_k3_done:\ns_endpgm')
    return e, descriptor(name, 256, 144), f'; @launch kernel={name} grid=(256,1,1) block=(448,1,1) lds={ST+7168}'

def gen_k4(name='k4_mix2_kernel'):
    e = Emit(); header(e, name)
    sw, stb, su = 40, 41, 42
    sU, sW, sH, sO = 4, 8, 12, 16
    e('s_cmp_ge_u32 s2, 224\ns_cbranch_scc1 L_k4_done')
    e(f's_load_dwordx2 s[62:63], s[0:1], {A_WS}')
    wave_id(e, sw)
    e(f's_mul_hi_u32 s{stb}, s2, {(2**32+6)//7}\ns_mul_i32 s{su}, s{stb}, 7\ns_sub_u32 s{su}, s2, s{su}')
    LL, SH, HA = 2, 4, 8
    e(f'v_lshlrev_b32 v{LL}, 4, v0\nv_and_b32 v10, 15, v0\nv_and_b32 v11, 48, v0')
    e(f's_lshl_b32 s43, s{stb}, 6\ns_lshl_b32 s44, s{sw}, 4\ns_add_u32 s43, s43, s44\nv_add_u32 v10, s43, v10\nv_mov_b32 v15, {FB}')
    for i, d in enumerate((-1, 1, -2, 2)):
        e(f'v_add_u32 v12, {d}, v10\nv_lshrrev_b32 v13, 4, v12\nv_and_b32 v13, 0xff, v13\nv_mul_u32_u24 v13, 14336, v13')
        e(f'v_and_b32 v14, 15, v12\nv_add_u32 v14, v14, v11\nv_lshl_add_u32 v13, v14, 4, v13\nv_cmp_gt_i32 vcc, 0, v12\ns_nop 1\nv_cndmask_b32 v{SH+i}, v13, v15, vcc')
    e(f's_mul_i32 s43, s{stb}, 56\ns_lshl_b32 s44, s{su}, 1\ns_add_u32 s43, s43, s44\ns_lshr_b32 s44, s{sw}, 1\ns_add_u32 s43, s43, s44\ns_lshl_b32 s43, s43, 10')
    e(f's_and_b32 s44, s{sw}, 1\ns_lshl_b32 s44, s44, 3\ns_add_u32 s43, s43, s44\nv_add_u32 v{HA}, s43, v{LL}')
    for g in range(4): e(f's_mov_b32 s{52+g}, {g*14336}')
    for j in range(4): e(f's_mov_b32 s{56+j}, {j*4096}')
    e(f's_lshl_b32 s45, s{sw}, 14')
    e('s_waitcnt lgkmcnt(0)')
    srd_off(e, sU, 62, 63, UU, FB)
    srd_off(e, sW, 62, 63, W2F, 448 * 896)
    srd_off(e, sH, 62, 63, HH, FB)
    srd_off(e, sO, 62, 63, X1, FB)
    sg = lambda nb: nb // 7
    for ks in range(14):
        if ks % 4 == 0: e(f's_add_u32 m0, s45, {ks*1024}\ns_nop 0')
        e.vm(f'buffer_load_dwordx4 v{SH+sg(2*ks)}, s[{sU}:{sU+3}], s{56+ks//4} offen offset:{(ks%4)*1024} lds', 'u')
    for x, ks in enumerate((3, 10)):
        e(f's_add_u32 m0, s45, {(14+x)*1024 - (ks%4)*1024}\ns_nop 0')
        e.vm(f'buffer_load_dwordx4 v{SH+sg(2*ks+1)}, s[{sU}:{sU+3}], s{56+ks//4} offen offset:{(ks%4)*1024} lds', 'u')
    WA = 16; HV = 72; B = 80; AC = 112
    e(f's_lshl_b32 s44, s{su}, 2\ns_add_u32 s44, s44, s{sw}\ns_mul_i32 s44, s44, 14336')
    for ks in range(14):
        if ks and ks % 4 == 0: e('s_add_u32 s44, s44, 4096')
        e.vm(f'buffer_load_dwordx4 {V(WA+4*ks,4)}, v{LL}, s[{sW}:{sW+3}], s44 offen offset:{(ks%4)*1024}', f'w{ks}')
    for g in range(4): e.vm(f'buffer_load_dwordx2 {V(HV+2*g,2)}, v{HA}, s[{sH}:{sH+3}], s{52+g} offen', 'h')
    e.waitvm('u')
    e('s_barrier')
    def rd(ks):
        for g in range(4):
            f = B + 16 * (ks & 1) + 4 * g
            if ks in (3, 10):
                e.ds(f'ds_read_b64 {V(f,2)}, v{LL} offset:{g*16384+ks*1024}', f'b{ks}')
                e.ds(f'ds_read_b64 {V(f+2,2)}, v{LL} offset:{g*16384+(14+(ks==10))*1024+8}', f'b{ks}')
            else:
                e.ds(f'ds_read_b128 {V(f,4)}, v{LL} offset:{g*16384+ks*1024}', f'b{ks}')
    rd(0)
    for ks in range(14):
        if ks + 1 < 14: rd(ks + 1)
        e.waitds(f'b{ks}'); e.waitvm(f'w{ks}')
        for g in range(4):
            c = '0' if ks == 0 else V(AC + 4 * g, 4)
            e(f'v_mfma_f32_16x16x32_bf16 {V(AC+4*g,4)}, {V(WA+4*ks,4)}, {V(B+16*(ks&1)+4*g,4)}, {c}')
    e.waitvm('h')
    unpack(e, WA, HV, 8)
    for i in range(8): e(f'v_pk_add_f32 {V(AC+2*i,2)}, {V(AC+2*i,2)}, {V(WA+2*i,2)}')
    pack(e, HV, AC, 8)
    for g in range(4): e(f'buffer_store_dwordx2 {V(HV+2*g,2)}, v{HA}, s[{sO}:{sO+3}], s{52+g} offen')
    e('s_waitcnt vmcnt(0)')
    e('L_k4_done:\ns_endpgm')
    return e, descriptor(name, 128, 128), f'; @launch kernel={name} grid=(224,1,1) block=(256,1,1) lds=65536'

def gen_k5(name='k5_mlp_kernel'):
    e = Emit(); header(e, name)
    sw, stb, sfc = 40, 41, 42
    sX, sW3, sW4, sO = 4, 8, 12, 16
    BL, HL, ST = 0, 57344, 57344 + 28672
    e('s_cmp_ge_u32 s2, 256\ns_cbranch_scc1 L_k5_done')
    e(f's_load_dwordx2 s[62:63], s[0:1], {A_WS}')
    wave_id(e, sw)
    e(f's_and_b32 s{sfc}, s2, 7\ns_lshr_b32 s{stb}, s2, 3')
    LL, SW_, SR_, BW, HW = 2, 3, 4, 5, 6
    e(f'v_lshlrev_b32 v{LL}, 4, v0\nv_lshlrev_b32 v{SR_}, 3, v0\nv_add_u32 v{SR_}, {ST}, v{SR_}\ns_lshl_b32 s46, s{sw}, 9\nv_add_u32 v{SW_}, s46, v{SR_}')
    e(f's_lshl_b32 s46, s{sw}, 13\nv_add_u32 v{BW}, s46, v{LL}\ns_lshl_b32 s46, s{sw}, 12\ns_add_u32 s46, s46, {HL}\nv_add_u32 v{HW}, s46, v{LL}')
    e(f'v_add_u32 v7, {HL}, v{LL}')
    e(f's_mul_i32 s43, s{stb}, 56\ns_lshl_b32 s44, s{sw}, 1\ns_add_u32 s43, s43, s44\ns_lshl_b32 s52, s43, 10')
    for g in range(1, 4): e(f's_add_u32 s{52+g}, s{51+g}, 14336')
    e('s_waitcnt lgkmcnt(0)')
    srd_off(e, sX, 62, 63, X1, FB)
    srd_off(e, sW3, 62, 63, W3F, 448 * 3584)
    srd_off(e, sW4, 62, 63, W4F, 448 * 3584)
    e(f's_mul_i32 s46, s{sfc}, {FB}\ns_add_u32 s46, s46, {PART2}')
    srd_off(e, sO, 62, 63, 's46', FB)
    RAW, VAL, T = 8, 40, 104
    for g in range(4):
        for k in range(2): e.vm(f'buffer_load_dwordx4 {V(RAW+8*g+4*k,4)}, v{LL}, s[{sX}:{sX+3}], s{52+g} offen offset:{k*1024}', f'x{g}')
    e(f's_mul_i32 s44, s{sfc}, 14\ns_lshl_b32 s45, s{sw}, 1\ns_add_u32 s44, s44, s45\ns_mul_i32 s44, s44, 14336\ns_add_u32 s45, s44, 14336')
    for ks in range(14):
        if ks and ks % 4 == 0: e('s_add_u32 s44, s44, 4096\ns_add_u32 s45, s45, 4096')
        for b in range(2):
            e.vm(f'buffer_load_dwordx4 {A(8*ks+4*b,4)}, v{LL}, s[{sW3}:{sW3+3}], s{44+b} offen offset:{(ks%4)*1024}', f'w{ks}')
    e(f's_lshl_b32 s44, s{sw}, 2\ns_mul_i32 s44, s44, 57344\ns_mul_i32 s45, s{sfc}, 7168\ns_add_u32 s56, s44, s45')
    for k in range(1, 4): e(f's_add_u32 s{56+k}, s{55+k}, 57344')
    e(f's_mov_b32 s50, {f2u(GC0)}\ns_mov_b32 s51, {f2u(GC1)}')
    for g in range(4):
        e.waitvm(f'x{g}'); unpack(e, VAL + 16 * g, RAW + 8 * g, 8)
        v = VAL + 16 * g; t = T + 4 * g
        e(f'v_pk_add_f32 {V(t,2)}, {V(v,2)}, {V(v+2,2)}\nv_pk_mul_f32 {V(t+2,2)}, {V(v,2)}, {V(v,2)}\nv_pk_fma_f32 {V(t+2,2)}, {V(v+2,2)}, {V(v+2,2)}, {V(t+2,2)}')
        for i in range(2, 8): e(f'v_pk_add_f32 {V(t,2)}, {V(t,2)}, {V(v+2*i,2)}\nv_pk_fma_f32 {V(t+2,2)}, {V(v+2*i,2)}, {V(v+2*i,2)}, {V(t+2,2)}')
        e(f'v_add_f32 v{t}, v{t}, v{t+1}\nv_add_f32 v{t+1}, v{t+2}, v{t+3}')
    xop_grp_multi(e, [T + 4 * g + j for g in range(4) for j in range(2)], [T + 4 * g + 2 + j for g in range(4) for j in range(2)], 'v_add_f32')
    for g in range(4): e.ds(f'ds_write_b64 v{SW_}, {V(T+4*g,2)} offset:{g*3584}', 'sw')
    e.waitds0()
    e('s_barrier')
    for g in range(4):
        RB = RAW if g % 2 == 0 else RAW + 16
        for w in range(7): e.ds(f'ds_read_b64 {V(RB+2*w,2)}, v{SR_} offset:{g*3584+w*512}', f'sr{g}')
        if g == 0: continue
        consume = g - 1
        k5_norm(e, consume, RAW, VAL, T, BW)
    k5_norm(e, 3, RAW, VAL, T, BW)
    e.waitds0()
    e('s_barrier')
    B = RAW; AC = VAL
    def rd(base, ks):
        for g in range(4): e.ds(f'ds_read_b128 {V(B+16*(ks&1)+4*g,4)}, v{base} offset:{(ks*4+g)*1024}', f'b{ks}')
    rd(LL, 0)
    for ks in range(14):
        if ks + 1 < 14: rd(LL, ks + 1)
        e.waitds(f'b{ks}'); e.waitvm(f'w{ks}')
        for b in range(2):
            for g in range(4):
                d = AC + 16 * b + 4 * g
                c = '0' if ks == 0 else V(d, 4)
                e(f'v_mfma_f32_16x16x32_bf16 {V(d,4)}, {A(8*ks+4*b,4)}, {V(B+16*(ks&1)+4*g,4)}, {c}')
        for b in range(2):
            y = 2 * ks + b; k2, blk = divmod(y, 4)
            if y == 16:
                for k in range(4): e(f's_add_u32 s{56+k}, s{56+k}, 4096')
            e.vm(f'buffer_load_dwordx4 {A(4*y,4)}, v{LL}, s[{sW4}:{sW4+3}], s{56+blk} offen offset:{(k2%4)*1024}', f'z{k2}')
    e('s_nop 5')
    gelu(e, list(range(AC, AC + 32)), list(range(T, T + 32)), 50, 51)
    for g in range(4):
        o = T + 4 * g
        e(f'v_cvt_pk_bf16_f32 v{o}, v{AC+4*g}, v{AC+4*g+1}\nv_cvt_pk_bf16_f32 v{o+1}, v{AC+4*g+2}, v{AC+4*g+3}')
        e(f'v_cvt_pk_bf16_f32 v{o+2}, v{AC+16+4*g}, v{AC+16+4*g+1}\nv_cvt_pk_bf16_f32 v{o+3}, v{AC+16+4*g+2}, v{AC+16+4*g+3}')
        e.ds(f'ds_write_b128 v{HW}, {V(o,4)} offset:{g*1024}', 'hw')
    e.waitds0()
    e('s_barrier')
    rd(7, 0)
    for k2 in range(7):
        if k2 + 1 < 7: rd(7, k2 + 1)
        e.waitds(f'b{k2}'); e.waitvm(f'z{k2}')
        for blk in range(4):
            for g in range(4):
                d = AC + 16 * blk + 4 * g
                c = '0' if k2 == 0 else V(d, 4)
                e(f'v_mfma_f32_16x16x32_bf16 {V(d,4)}, {A(16*k2+4*blk,4)}, {V(B+16*(k2&1)+4*g,4)}, {c}')
    e('s_nop 7')
    for g in range(4):
        for pr in range(2):
            o = T + 8 * g + 4 * pr; a0 = AC + 32 * pr + 4 * g; a1 = a0 + 16
            e(f'v_cvt_pk_bf16_f32 v{o}, v{a0}, v{a0+1}\nv_cvt_pk_bf16_f32 v{o+1}, v{a0+2}, v{a0+3}')
            e(f'v_cvt_pk_bf16_f32 v{o+2}, v{a1}, v{a1+1}\nv_cvt_pk_bf16_f32 v{o+3}, v{a1+2}, v{a1+3}')
            e(f'buffer_store_dwordx4 {V(o,4)}, v{LL}, s[{sO}:{sO+3}], s{52+g} offen offset:{pr*1024}')
    e('s_waitcnt vmcnt(0)')
    e('L_k5_done:\ns_endpgm')
    return e, descriptor(name, 256, 144), f'; @launch kernel={name} grid=(256,1,1) block=(448,1,1) lds={ST+14336}'

def k5_norm(e, g, RAW, VAL, T, BW):
    RB = RAW if g % 2 == 0 else RAW + 16
    t = T + 16; v = VAL + 16 * g
    e.waitds(f'sr{g}')
    e(f'v_pk_add_f32 {V(t,2)}, {V(RB,2)}, {V(RB+2,2)}')
    for w in range(2, 7): e(f'v_pk_add_f32 {V(t,2)}, {V(t,2)}, {V(RB+2*w,2)}')
    e(f'v_mul_f32 v{t+2}, {f2u(-1.0/448)}, v{t}\nv_mov_b32 v{t+3}, {f2u(1e-5)}\nv_fmac_f32 v{t+3}, {f2u(1.0/448)}, v{t+1}')
    e(f'v_fma_f32 v{t+3}, -v{t+2}, v{t+2}, v{t+3}\nv_max_f32 v{t+3}, {f2u(1e-5)}, v{t+3}\nv_rsq_f32 v{t+4}, v{t+3}')
    for i in range(8): e(f'v_pk_add_f32 {V(v+2*i,2)}, {V(v+2*i,2)}, {V(t+2,2)} op_sel_hi:[1,0]')
    for i in range(8): e(f'v_pk_mul_f32 {V(v+2*i,2)}, {V(v+2*i,2)}, {V(t+4,2)} op_sel_hi:[1,0]')
    o = T + 24 + 8 * (g & 1)
    pack(e, o, v, 8)
    for k in range(2): e.ds(f'ds_write_b128 v{BW}, {V(o+4*k,4)} offset:{(k*4+g)*1024}', 'bw')

def gen_k6(name='k6_out_kernel'):
    e = Emit(); header(e, name)
    sw = 40
    sP, sX1, sX2, sM, sO = 4, 8, 12, 16, 20
    e('s_cmp_ge_u32 s2, 256\ns_cbranch_scc1 L_k6_done')
    e(f's_load_dwordx2 s[62:63], s[0:1], {A_WS}\ns_load_dwordx2 s[60:61], s[0:1], {A_OUT}')
    e('v_mov_b32 v9, v0')
    wave_id(e, sw)
    LL, MA, TW, OA = 2, 3, 4, 5
    e(f'v_lshlrev_b32 v{LL}, 4, v0\ns_mul_i32 s43, s2, 7\ns_add_u32 s43, s43, s{sw}\ns_lshl_b32 s43, s43, 10')
    e(f's_and_b32 s44, s2, 1\ns_mul_i32 s45, s44, 7\ns_add_u32 s45, s45, s{sw}\ns_lshl_b32 s45, s45, 6')
    e(f'v_lshrrev_b32 v6, 4, v0\nv_lshlrev_b32 v7, 4, v6\nv_add_u32 v{MA}, s45, v7')
    e(f'v_and_b32 v7, 15, v0\nv_mul_u32_u24 v7, 448, v7\nv_lshl_add_u32 v7, v6, 3, v7\ns_lshl_b32 s45, s{sw}, 6\nv_add_u32 v{TW}, s45, v7')
    e(f'v_mul_u32_u24 v6, 2341, v9\nv_lshrrev_b32 v6, 16, v6\nv_mul_u32_u24 v6, 448, v6\nv_lshlrev_b32 v9, 4, v9')
    e(f's_lshr_b32 s45, s2, 1\ns_mul_i32 s45, s45, 14336\ns_mul_i32 s44, s44, 448\ns_add_u32 s45, s45, s44\nv_add3_u32 v{OA}, v6, v9, s45')
    e('s_waitcnt lgkmcnt(0)')
    srd_off(e, sP, 62, 63, PART2, 8 * FB)
    srd_off(e, sX1, 62, 63, X1, FB)
    srd_off(e, sX2, 62, 63, X2, FB)
    srd_off(e, sM, 62, 63, MODF, 6 * 896)
    srd(e, sO, 60, 61, FB)
    PR = 24
    e.vm(f'buffer_load_dwordx4 v[12:15], v{LL}, s[{sX1}:{sX1+3}], s43 offen', 'a')
    e.vm(f'buffer_load_dwordx4 v[16:19], v{LL}, s[{sX2}:{sX2+3}], s43 offen', 'a')
    e.vm(f'buffer_load_dwordx4 v[20:23], v{MA}, s[{sM}:{sM+3}], 0 offen offset:{5*896-4096}' .replace(', 0 offen', ', s46 offen'), 'a') if False else None
    e('s_mov_b32 s46, 4480')
    e.vm(f'buffer_load_dwordx4 v[20:23], v{MA}, s[{sM}:{sM+3}], s46 offen', 'a')
    for p in range(8):
        if p: e(f's_add_u32 s43, s43, {FB}')
        e.vm(f'buffer_load_dwordx4 {V(PR+4*p,4)}, v{LL}, s[{sP}:{sP+3}], s43 offen', f'p{p}')
    AC, T, X2V, GB = 56, 64, 72, 80
    e.waitvm('a')
    unpack(e, AC, 12, 4); unpack(e, X2V, 16, 4); unpack(e, GB, 20, 4)
    for p in range(8):
        e.waitvm(f'p{p}'); unpack(e, T, PR + 4 * p, 4)
        for i in range(4): e(f'v_pk_add_f32 {V(AC+2*i,2)}, {V(AC+2*i,2)}, {V(T+2*i,2)}')
    for i in range(4): e(f'v_pk_fma_f32 {V(AC+2*i,2)}, {V(AC+2*i,2)}, {V(GB+2*i,2)}, {V(X2V+2*i,2)}')
    pack(e, T, AC, 4)
    e(f'ds_write_b64 v{TW}, {V(T,2)}\nds_write_b64 v{TW}, {V(T+2,2)} offset:32\ns_waitcnt lgkmcnt(0)\ns_barrier')
    e(f'ds_read_b128 v[12:15], v9\ns_waitcnt lgkmcnt(0)')
    e(f'buffer_store_dwordx4 v[12:15], v{OA}, s[{sO}:{sO+3}], 0 offen\ns_waitcnt vmcnt(0)')
    e('L_k6_done:\ns_endpgm')
    return e, descriptor(name, 88, 88), f'; @launch kernel={name} grid=(256,1,1) block=(448,1,1) lds=7168'

def gen_tail():
    return [gen_k3(), gen_k4(), gen_k5(), gen_k6()]
```

```python
import sys
from asmlib import *
from common import *
from k1 import gen_k1
from k2 import K2

def build(path, kernels):
    ref = open('adaLN_cond__gqa_block_cached__mixer_s_mlp__prompt.s.ref').read().split('\n')
    head = [l for l in ref if l.startswith(';') and '@launch' not in l and not l.startswith('; Override') and not l.startswith('; grid=')]
    out = '\n'.join(head) + '\n'
    out += '\n'.join(k[2] for k in kernels) + '\n'
    out += '.amdgcn_target "amdgcn-amd-amdhsa--gfx950"\n.text\n'
    nprob = 0
    for e, d, l in kernels:
        pr = check_hazards(e.L, l.split('kernel=')[1].split()[0])
        for p in pr[:40]: print('HAZARD', p)
        nprob += len(pr)
        out += e.text()
    out += '.section .rodata,"a"\n'
    for e, d, l in kernels: out += d
    open(path, 'w').write(out)
    print('written', path, len(out), 'bytes; hazards:', nprob)

if __name__ == '__main__':
    import os
    Prof.on = bool(os.environ.get('PROF'))
    ks = [gen_k1(), K2(dbg=os.environ.get('K2DBG')).gen()]
    try:
        from tail import gen_tail
        ks += gen_tail()
    except ImportError:
        pass
    build(sys.argv[1] if len(sys.argv) > 1 else 'full.s', ks)
```

```python
import re, struct

def f2u(x):
    return '0x%08x' % struct.unpack('<I', struct.pack('<f', x))[0]

def V(a, n=1):
    return f'v{a}' if n == 1 else f'v[{a}:{a+n-1}]'
def A(a, n=1):
    return f'a{a}' if n == 1 else f'a[{a}:{a+n-1}]'
def S(a, n=1):
    return f's{a}' if n == 1 else f's[{a}:{a+n-1}]'

class Asm:
    def __init__(self):
        self.L = []
    def __call__(self, s):
        for x in s.split('\n'):
            x = x.strip()
            if x: self.L.append(x)
    def ext(self, lst):
        for x in lst: self(x)
    def text(self):
        out = []
        for x in self.L:
            if x.endswith(':') or x.startswith('.') or x.startswith(';'): out.append(x)
            else: out.append('    ' + x)
        return '\n'.join(out) + '\n'

_reg = re.compile(r'^(-|abs\()?\s*([vas])(\d+|\[(\d+):(\d+)\])\)?$')
def regs_of(op):
    op = op.strip()
    if op == 'vcc': return {('s', 106), ('s', 107)}
    if op == 'exec': return {('s', 126), ('s', 127)}
    if op == 'm0': return {('s', 124)}
    m = _reg.match(op)
    if not m: return set()
    k = m.group(2)
    if m.group(4) is not None:
        return {(k, i) for i in range(int(m.group(4)), int(m.group(5)) + 1)}
    return {(k, int(m.group(3)))}

TRANS = ('v_exp_f32', 'v_log_f32', 'v_rcp_f32', 'v_rsq_f32', 'v_sqrt_f32', 'v_sin_f32', 'v_cos_f32')
def parse(line):
    line = line.split(';')[0].strip()
    parts = line.split(None, 1)
    op = parts[0]
    rest = parts[1] if len(parts) > 1 else ''
    ops = [x.strip() for x in re.split(r',(?![^\[]*\])', rest)] if rest else []
    clean = []
    for o in ops:
        clean.append(o.split()[0] if o else o)
    d = dict(op=op, defs=set(), uses=set(), cls='other', srcc=set(), line=line)
    R = [regs_of(o) for o in clean]
    if op.startswith('v_mfma'):
        d['cls'] = 'mfma'; d['defs'] = R[0]; d['uses'] = R[1] | R[2] | R[3]; d['srcc'] = R[3]; d['ab'] = R[1] | R[2]
        d['passes'] = 4 if '16x16x32' in op else 8
    elif op.startswith('v_cmp'):
        d['cls'] = 'valu'; d['defs'] = R[0]; d['uses'] = set().union(*R[1:])
    elif op.startswith('v_readfirstlane') or op.startswith('v_readlane'):
        d['cls'] = 'valu'; d['defs'] = R[0]; d['uses'] = set().union(*R[1:]); d['rl'] = True
    elif op.startswith('v_permlane'):
        d['cls'] = 'valu'; d['defs'] = R[0] | R[1]; d['uses'] = R[0] | R[1]; d['perm'] = True
    elif op.startswith('v_'):
        d['cls'] = 'valu'; d['defs'] = set(R[0]); d['uses'] = set().union(*R[1:]) if len(R) > 1 else set()
        if op.startswith(('v_fmac', 'v_pk_fmac')): d['uses'] |= R[0]
        if op.startswith(('v_add_co', 'v_addc_co', 'v_sub_co')): d['defs'] |= R[1]
        if op.startswith('v_cndmask') and len(R) == 3: d['uses'] |= regs_of('vcc')
        if '_dpp' in op or 'quad_perm' in line or 'row_' in line: d['dpp'] = True;
        if op.split('_e32')[0].split('_e64')[0] in TRANS: d['trans'] = True
        if 'sdwa' in op: d['sdwa'] = True
    elif op.startswith('ds_read'):
        d['cls'] = 'ds'; d['defs'] = R[0]; d['uses'] = set().union(*R[1:])
    elif op.startswith(('ds_write', 'ds_add')):
        d['cls'] = 'ds'; d['uses'] = set().union(*R)
    elif op.startswith(('ds_bpermute', 'ds_swizzle', 'ds_permute')):
        d['cls'] = 'ds'; d['defs'] = R[0]; d['uses'] = set().union(*R[1:])
    elif op.startswith(('buffer_load', 'global_load')):
        d['cls'] = 'vmem'
        if line.rstrip().endswith(' lds') or ' lds ' in line:
            d['uses'] = set().union(*R) | regs_of('m0'); d['dma'] = True
        else:
            d['defs'] = R[0]; d['uses'] = set().union(*R[1:])
    elif op.startswith(('buffer_store', 'global_store', 'buffer_atomic', 'global_atomic')):
        d['cls'] = 'vmem'; d['uses'] = set().union(*R); d['store'] = R[0] if op.startswith('buffer') else R[1]
        d['wide'] = op.endswith(('x3', 'x4'))
    elif op.startswith('s_nop'):
        d['cls'] = 'nop'; d['n'] = int(clean[0], 0) + 1
    elif op.startswith('s_'):
        d['cls'] = 'salu'
        if op.startswith(('s_cmp', 's_cbranch', 's_branch', 's_waitcnt', 's_barrier', 's_endpgm', 's_setprio', 's_sleep')):
            d['uses'] = set().union(*R) if R else set()
        else:
            d['defs'] = R[0] if R else set(); d['uses'] = set().union(*R[1:]) if len(R) > 1 else set()
            if 'saveexec' in op: d['defs'] |= regs_of('exec')
    return d

def check_hazards(lines, name=''):
    ins = []
    for x in lines:
        if x.endswith(':') or x.startswith('.') or x.startswith(';'): continue
        ins.append(parse(x))
    probs = []
    W = 24
    for i, c in enumerate(ins):
        dist = 0
        for j in range(i - 1, max(-1, i - W - 1), -1):
            p = ins[j]
            need = 0
            isv = lambda r: r[0] in 'va'
            if p['cls'] == 'mfma':
                n = p['passes']
                tab = {4: (8, 6, 3), 8: (12, 10, 7)}[n]
                if c['cls'] == 'mfma':
                    if p['defs'] & c['ab']: need = max(need, tab[0])
                    ov = p['defs'] & c['srcc']
                    if ov and not (p['defs'] == c['srcc'] and p['passes'] == c['passes']): need = max(need, tab[1])
                    if (p['defs'] & c['defs']) and not ov: need = max(need, tab[1])
                elif c['cls'] in ('valu', 'ds', 'vmem'):
                    if p['defs'] & (c['uses'] | c['defs']): need = max(need, tab[0])
                    if c['cls'] == 'valu' and (p['srcc'] & c['defs']): need = max(need, tab[2])
            elif p['cls'] == 'valu':
                vd = {r for r in p['defs'] if isv(r)}; sd = {r for r in p['defs'] if r[0] == 's'}
                if c['cls'] == 'mfma' and (vd & c['uses']): need = max(need, 2)
                if c['cls'] == 'valu':
                    if p.get('trans') and not c.get('trans') and (vd & c['uses']): need = max(need, 1)
                    if p.get('trans') and c.get('trans') and (vd & c['uses']): need = max(need, 1)
                    if c.get('dpp') and (vd & c['uses']): need = max(need, 2)
                    if c.get('perm') and (vd & c['uses']): need = max(need, 2)
                    if c.get('rl') and (vd & c['uses']): need = max(need, 1)
                    if p.get('sdwa') and (vd & c['uses']): need = max(need, 1)
                    if sd & c['uses']: need = max(need, 2)
                if c['cls'] == 'vmem' and (sd & c['uses']): need = max(need, 5)
                if c['cls'] == 'salu' and (sd & c['uses']) and not c['op'].startswith('s_cbranch'): need = max(need, 1)
            elif p['cls'] == 'salu':
                if ('s', 124) in p['defs'] and c.get('dma'): need = max(need, 1)
            elif p['cls'] == 'vmem' and p.get('wide'):
                if p['store'] & c['defs']: need = max(need, 2 if c['cls'] == 'valu' else 1)
            if need > dist:
                probs.append(f'{name}: need {need} have {dist}: [{p["line"]}] -> [{c["line"]}]')
            dist += p['n'] if p['cls'] == 'nop' else 1
            if dist >= 20: break
    return probs


class Emit(Asm):
    def __init__(self):
        super().__init__()
        self.vmq = []; self.dsq = []
    def vm(self, s, tag=None):
        self(s); self.vmq.append(tag)
    def ds(self, s, tag=None):
        self(s); self.dsq.append(tag)
    def _need(self, q, tags):
        idx = -1
        for i, t in enumerate(q):
            if t in tags: idx = i
        return idx
    def waitvm(self, *tags):
        idx = self._need(self.vmq, tags)
        if idx < 0: return
        n = len(self.vmq) - 1 - idx
        assert n <= 63, n
        self(f's_waitcnt vmcnt({n})'); self.vmq = self.vmq[idx + 1:]
    def waitds(self, *tags):
        idx = self._need(self.dsq, tags)
        if idx < 0: return
        n = len(self.dsq) - 1 - idx
        if n > 15:
            n = 15; idx = len(self.dsq) - 1 - 15
        self(f's_waitcnt lgkmcnt({n})'); self.dsq = self.dsq[idx + 1:]
    def waitds0(self):
        self('s_waitcnt lgkmcnt(0)'); self.dsq = []
    def waitvm0(self):
        self('s_waitcnt vmcnt(0)'); self.vmq = []
    def item(self, it):
        if isinstance(it, str): self(it)
        elif it[0] == 'vm': self.vm(it[1], it[2])
        elif it[0] == 'ds': self.ds(it[1], it[2])
        elif it[0] == 'wvm': self.waitvm(*it[1:])
        elif it[0] == 'wds': self.waitds(*it[1:])
        else: raise ValueError(it)

def srd(e, d, lo, hi, size):
    if lo != d: e(f's_mov_b32 s{d}, s{lo}')
    if hi != d + 1: e(f's_mov_b32 s{d+1}, s{hi}')
    e(f's_mov_b32 s{d+2}, {size}')
    e(f's_mov_b32 s{d+3}, 0x20000')

def srd_off(e, d, lo, hi, off, size):
    e(f's_add_u32 s{d}, s{lo}, {off}')
    e(f's_addc_u32 s{d+1}, s{hi}, 0')
    e(f's_mov_b32 s{d+2}, {size}')
    e(f's_mov_b32 s{d+3}, 0x20000')

def descriptor(name, vgpr, accum, sgpr=102):
    return f'''.p2align 6
.amdhsa_kernel {name}
  .amdhsa_next_free_vgpr {vgpr}
  .amdhsa_next_free_sgpr {sgpr}
  .amdhsa_accum_offset {accum}
  .amdhsa_group_segment_fixed_size 0
  .amdhsa_kernarg_size 120
  .amdhsa_user_sgpr_count 2
  .amdhsa_user_sgpr_kernarg_segment_ptr 1
  .amdhsa_system_sgpr_workgroup_id_x 1
.end_amdhsa_kernel
'''
def header(e, name):
    e(f'.globl {name}\n.p2align 8\n.type {name},@function\n{name}:')

def xsum_grp(e, r, t):
    e(f'v_mov_b32 v{t}, v{r}\ns_nop 1\nv_permlane32_swap_b32 v{r}, v{t}\ns_nop 1\nv_add_f32 v{r}, v{r}, v{t}')
    e(f'v_mov_b32 v{t}, v{r}\ns_nop 1\nv_permlane16_swap_b32 v{r}, v{t}\ns_nop 1\nv_add_f32 v{r}, v{r}, v{t}')
def xop_grp_multi(e, rs, ts, op):
    for sw in ('v_permlane32_swap_b32', 'v_permlane16_swap_b32'):
        for r, t in zip(rs, ts): e(f'v_mov_b32 v{t}, v{r}')
        e('s_nop 1')
        for r, t in zip(rs, ts): e(f'{sw} v{r}, v{t}')
        e('s_nop 1')
        for r, t in zip(rs, ts): e(f'{op} v{r}, v{r}, v{t}')


class Prof:
    on = False
    def __init__(self, e, kid, pairs, wsreg, swave):
        self.e = e; self.kid = kid; self.pairs = list(pairs); self.used = []; self.ws = wsreg; self.sw = swave
    def stamp(self):
        if not Prof.on: return
        p = self.pairs.pop(0); self.used.append(p)
        self.e(f's_memrealtime s[{p}:{p+1}]')
    def keep(self, dst):
        if not Prof.on: return
        p = self.used.pop(); self.e(f's_mov_b32 s{dst}, s{p}'); self.used.append(dst)
    def flush(self, base, srdreg, t):
        if not Prof.on: return
        e = self.e
        self.stamp()
        e('s_waitcnt lgkmcnt(0)')
        e(f's_lshl_b32 s{t}, s2, 3\ns_add_u32 s{t}, s{t}, s{self.sw}\ns_lshl_b32 s{t}, s{t}, 6\ns_add_u32 s{t}, s{t}, {base + self.kid * (1 << 20)}')
        srd_off(e, srdreg, self.ws, self.ws + 1, f's{t}', 64)
        e('s_mov_b64 exec, 1\nv_mov_b32 v0, 0')
        for i, p in enumerate(self.used):
            e(f'v_mov_b32 v1, s{p}\nbuffer_store_dword v1, v0, s[{srdreg}:{srdreg+3}], 0 offen offset:{4*i}')
        e('s_waitcnt vmcnt(0)')
```

```python
from asmlib import *
from common import *

sK, sV, sWq, sWo, sX, sMod, sPart, sSrc, sDst = 4, 8, 12, 16, 20, 24, 28, 32, 36
sw, stb, skvh, scnt = 40, 41, 42, 43
SO0, SO1 = 44, 48
sW4k, sTHR, sQS, sT0 = 52, 53, 54, 55
SWQ = 56
sRing, sT1, sT2, sT3 = 60, 61, 62, 63
SSD = 64
sRet = 72
sWoK = 74
sPtr = 76
Q, Sr, P, FR = 0, 128, 160, 192
KA, VA, DK, DV, NM, LS, PS, TM, CK = 216, 218, 222, 223, 224, 240, 244, 248, 252
XT = 208
KSLOT = [0, 32768]; VBASE = 65536; SPARE = 131072

class K2:
    def __init__(self, name='k2_attn_kernel', bias=0.0, thr=60.0, waitper=2, dbg=None):
        self.name = name; self.bias = bias; self.thr = thr; self.waitper = waitper; self.dbg = dbg
        self.e = Emit(); self.stubs = []; self.nstub = 0

    def setup(self):
        e = self.e
        header(e, self.name)
        e('s_cmp_ge_u32 s2, 256\ns_cbranch_scc1 L_k2_done')
        self.pf = Prof(e, 1, [98, 76, 78, 80, 82, 84, 88, 90, 92, 94, 96], 86, sw)
        self.pf.stamp()
        e(f's_load_dwordx8 s[76:83], s[0:1], {A_X}')
        e(f's_load_dwordx2 s[84:85], s[0:1], {A_WO}')
        e(f's_load_dwordx8 s[88:95], s[0:1], {A_W1}')
        e(f's_load_dwordx2 s[86:87], s[0:1], {A_WS}')
        e(f'v_lshrrev_b32 v1, 6, v0\nv_and_b32 v0, 63, v0\ns_and_b32 s{skvh}, s2, 7\nv_readfirstlane_b32 s{sw}, v1\ns_lshr_b32 s{stb}, s2, 3')
        e('v_and_b32 v1, 15, v0\nv_lshrrev_b32 v2, 4, v0\nv_lshrrev_b32 v3, 3, v0\nv_and_b32 v4, 7, v0')
        e('v_and_b32 v5, 6, v3\nv_xor_b32 v5, v4, v5\nv_lshlrev_b32 v5, 4, v5')
        e(f's_lshl_b32 s{sW4k}, s{sw}, 12')
        e(f's_lshr_b32 s{sT0}, s{sw}, 1')
        e(f's_lshl_b32 s{sT1}, s{sT0}, 14')
        e(f's_lshl_b32 s{sT2}, s{stb}, 15\nv_lshlrev_b32 v6, 9, v3\nv_add3_u32 v{DK}, v6, v5, s{sT2}\nv_mov_b32 v{DV}, v{DK}')
        e('v_and_b32 v6, 7, v1\nv_lshrrev_b32 v7, 3, v1\nv_lshlrev_b32 v7, 10, v7\nv_lshlrev_b32 v8, 7, v6\nv_add_u32 v7, v7, v8')
        e(f'v_add_u32 v7, s{sT1}, v7\nv_and_b32 v6, 6, v6\nv_xor_b32 v6, v2, v6\nv_lshlrev_b32 v6, 4, v6')
        e(f'v_add_u32 v{KA}, v7, v6\nv_xor_b32 v6, 64, v6\nv_add_u32 v{KA+1}, v7, v6')
        e('v_and_b32 v6, 1, v2\nv_lshlrev_b32 v6, 2, v6\nv_lshrrev_b32 v7, 2, v1\nv_add_u32 v6, v6, v7')
        e('v_lshrrev_b32 v7, 1, v2\nv_lshlrev_b32 v7, 10, v7\nv_lshlrev_b32 v8, 7, v6\nv_add_u32 v7, v7, v8')
        e('v_and_b32 v8, 1, v1\nv_lshlrev_b32 v8, 3, v8\nv_add_u32 v7, v7, v8')
        e('v_and_b32 v6, 6, v6\nv_bfe_u32 v8, v1, 1, 1\nv_xor_b32 v6, v6, v8')
        e(f's_add_u32 s{sT2}, s{sT1}, {VBASE}')
        for k in range(4):
            e(f'v_xor_b32 v8, {2*k}, v6\nv_lshlrev_b32 v8, 4, v8\nv_add3_u32 v{VA+k}, v7, v8, s{sT2}')
        e(f's_lshl_b32 s{sT2}, s{sw}, 7\ns_xor_b32 s{sT3}, s{sT2}, 256\ns_add_u32 s{sT3}, s{sT3}, 16384')
        for i in range(4):
            e(f's_add_u32 s{SO0+i}, s{sT2}, {i*3072}\ns_add_u32 s{SO1+i}, s{sT3}, {i*3072}')
        e(f's_mov_b32 s{sTHR}, {f2u(2.0**(self.thr-self.bias))}\ns_mov_b32 s{sQS}, {f2u(LOG2E/16)}')
        e('s_waitcnt lgkmcnt(0)')
        self.pf.keep(3)
        e(f's_lshl_b32 s{sT2}, s{skvh}, 20')
        srd_off(e, sK, 78, 79, f's{sT2}', 1 << 20)
        srd_off(e, sV, 80, 81, f's{sT2}', 1 << 20)
        srd(e, sWq, 82, 83, 448 * 8192)
        e(f's_mul_i32 s{sT2}, s{skvh}, {512*896}')
        srd_off(e, sWo, 84, 85, f's{sT2}', 512 * 896)
        srd(e, sX, 76, 77, FB)
        srd_off(e, sMod, 86, 87, MODN, 3584)
        e(f's_mul_i32 s{sT2}, s{skvh}, {FB}\ns_add_u32 s{sT2}, s{sT2}, {PART}')
        srd_off(e, sPart, 86, 87, f's{sT2}', FB)

    def side_setup(self):
        e = self.e
        t, ks, u, rs, nk = 96, 97, 98, 99, 100
        e(f's_lshl_b32 s{t}, s2, 2\ns_add_u32 s{t}, s{t}, s{sw}\ns_min_u32 s{t}, s{t}, 979')
        e(f's_mov_b32 s{sSrc}, s88\ns_mov_b32 s{sSrc+1}, s89\ns_mov_b32 s{sSrc+2}, {448*896}\ns_mov_b32 s{sSrc+3}, 0x20000')
        e(f's_mov_b32 s{rs}, 896\ns_mov_b32 s{nk}, {14*1024}\ns_mov_b32 s{sT2}, {W1F}\ns_mov_b32 s{sT3}, {(2**32+6)//7}\ns_mov_b32 s101, 7')
        e(f's_cmp_lt_u32 s{t}, 98\ns_cbranch_scc1 L_side_sel')
        e(f's_mov_b32 s{sSrc}, s90\ns_mov_b32 s{sSrc+1}, s91\ns_mov_b32 s{sT2}, {W2F}\ns_sub_u32 s{t}, s{t}, 98')
        e(f's_cmp_lt_u32 s{t}, 98\ns_cbranch_scc1 L_side_sel')
        e(f's_mov_b32 s{sSrc}, s92\ns_mov_b32 s{sSrc+1}, s93\ns_mov_b32 s{sSrc+2}, {448*3584}\ns_mov_b32 s{sT2}, {W3F}\ns_sub_u32 s{t}, s{t}, 98')
        e(f's_mov_b32 s{rs}, 3584\ns_mov_b32 s{sT3}, {(2**32+27)//28}\ns_mov_b32 s101, 28')
        e(f's_cmp_lt_u32 s{t}, 392\ns_cbranch_scc1 L_side_sel')
        e(f's_mov_b32 s{sSrc}, s94\ns_mov_b32 s{sSrc+1}, s95\ns_mov_b32 s{sT2}, {W4F}\ns_sub_u32 s{t}, s{t}, 392')
        e(f's_mov_b32 s{rs}, 896\ns_mov_b32 s{nk}, {56*1024}\ns_mov_b32 s{sT3}, {(2**32+6)//7}\ns_mov_b32 s101, 7')
        e('L_side_sel:')
        e(f's_mul_hi_u32 s{ks}, s{t}, s{sT3}\ns_mul_i32 s{u}, s{ks}, s101\ns_sub_u32 s{u}, s{t}, s{u}')
        srd_off(e, sDst, 86, 87, f's{sT2}', 448 * 3584)
        e(f's_mul_i32 s{sT2}, s{ks}, s{rs}\ns_lshl_b32 s{sT2}, s{sT2}, 5\ns_lshl_b32 s{sT3}, s{u}, 7\ns_add_u32 s{SSD}, s{sT2}, s{sT3}')
        e(f's_lshl_b32 s{sT2}, s{rs}, 3\ns_sub_u32 s{sT2}, s{sT2}, 1024')
        for i in range(1, 4): e(f's_add_u32 s{SSD+i}, s{SSD+i-1}, s{sT2}')
        e(f's_mul_i32 s{sT2}, s{u}, s{nk}\ns_lshl_b32 s{sT2}, s{sT2}, 2\ns_lshl_b32 s{sT3}, s{ks}, 10\ns_add_u32 s{SSD+4}, s{sT2}, s{sT3}')
        for i in range(1, 4): e(f's_add_u32 s{SSD+4+i}, s{SSD+3+i}, s{nk}')
        e(f'v_mul_lo_u32 v214, v3, s{rs}\nv_add_u32 v214, v214, v5')

    def prologue(self):
        e = self.e
        vXA, vPA, vHW, vHR, vWD, vWA, vQW, vLL, vSD = 200, 201, 202, 203, 204, 206, 210, 211, 214
        vSR = 240
        PAR = SPARE; SIDE = SPARE + 4096
        self.side_setup()
        e(f'v_lshlrev_b32 v{vLL}, 4, v0')
        e(f's_lshl_b32 s{sT2}, s{stb}, 6\ns_lshl_b32 s{sT3}, s{sw}, 4\ns_add_u32 s{sT2}, s{sT2}, s{sT3}')
        e(f'v_lshrrev_b32 v6, 2, v0\nv_and_b32 v7, 3, v0\nv_add_u32 v8, s{sT2}, v6\nv_mul_u32_u24 v8, 896, v8\nv_lshlrev_b32 v9, 4, v7\nv_add_u32 v{vXA}, v8, v9')
        e(f'v_lshlrev_b32 v{vPA}, 5, v7\nv_add_u32 v{vPA}, {PAR}, v{vPA}')
        e(f's_mul_i32 s{sT2}, s{sw}, 14336\nv_lshlrev_b32 v8, 1, v7\nv_xor_b32 v8, v6, v8\nv_lshl_add_u32 v8, v7, 4, v8\nv_lshlrev_b32 v8, 4, v8\nv_add_u32 v{vHW}, s{sT2}, v8')
        e(f'v_lshlrev_b32 v8, 1, v2\nv_xor_b32 v8, v1, v8\nv_lshl_add_u32 v8, v2, 4, v8\nv_lshlrev_b32 v{vHR}, 4, v8')
        e(f'v_and_b32 v8, 2, v3\nv_xor_b32 v8, v4, v8\nv_lshlrev_b32 v8, 4, v8\nv_lshl_add_u32 v{vWD}, v3, 13, v8\nv_xor_b32 v{vWD+1}, 64, v{vWD}')
        e(f's_and_b32 s{sT2}, s{sw}, 1\ns_lshl_b32 s{sT2}, s{sT2}, 9\ns_lshl_b32 s{sT3}, s{skvh}, 10\ns_add_u32 s{sT2}, s{sT2}, s{sT3}')
        e(f's_lshr_b32 s{sT3}, s{sw}, 1\ns_lshl_b32 s{sT3}, s{sT3}, 8\ns_add_u32 s{SWQ}, s{sT2}, s{sT3}')
        for i in range(1, 4): e(f's_add_u32 s{SWQ+i}, s{SWQ+i-1}, {65536-1024}')
        e(f's_lshl_b32 s{sRing}, s{sw}, 14\ns_add_u32 s{sRing}, s{sRing}, {VBASE}')
        e('v_lshlrev_b32 v6, 10, v2\nv_lshrrev_b32 v7, 2, v1\nv_lshl_add_u32 v6, v7, 7, v6\nv_and_b32 v7, 1, v1\nv_lshl_add_u32 v6, v7, 3, v6')
        e('v_bfe_u32 v7, v1, 3, 1\nv_and_b32 v8, 1, v2\nv_lshl_add_u32 v7, v8, 1, v7\nv_lshlrev_b32 v7, 1, v7\nv_bfe_u32 v8, v1, 1, 1\nv_xor_b32 v7, v7, v8')
        for k in range(4):
            e(f'v_xor_b32 v8, {2*k}, v7\nv_lshlrev_b32 v8, 4, v8\nv_add3_u32 v{vWA+k}, v6, v8, s{sRing}')
        e(f'v_lshrrev_b32 v6, 1, v2\nv_lshl_add_u32 v6, v6, 4, v1\nv_lshlrev_b32 v6, 4, v6\nv_and_b32 v7, 1, v2\nv_lshl_add_u32 v{vQW}, v7, 3, v6')
        e(f's_lshr_b32 s{sT0}, s{sw}, 1\ns_lshl_b32 s{sT0}, s{sT0}, 14\ns_sub_u32 s{sT2}, s{sW4k}, s{sT0}\ns_add_u32 s{sT2}, s{sT2}, {SIDE-VBASE}')
        for k in range(4): e(f'v_add_u32 v{vSR+k}, s{sT2}, v{VA+k}')
        e(f's_lshl_b32 s{sT2}, s{sw}, 10\ns_add_u32 m0, s{sT2}, {PAR}\ns_nop 0')
        e.vm(f'buffer_load_dwordx4 v{vLL}, s[{sMod}:{sMod+3}], s{sT2} offen lds', 'par')
        RAW = 112
        for ks in range(14):
            e.vm(f'buffer_load_dwordx4 {V(RAW+4*ks,4)}, v{vXA}, s[{sX}:{sX+3}], 0 offen offset:{ks*64}', f'x{ks}')
        def wq_dma(n):
            it = [f's_add_u32 m0, s{sRing}, {(n%4)*4096}', 's_nop 0']
            for rg in range(4):
                it.append(('vm', f'buffer_load_dwordx4 v{vWD+(rg&1)}, s[{sWq}:{sWq+3}], s{SWQ+rg} offen offset:{rg*1024} lds', f'wq{n}'))
            adv = 262144 if n % 14 != 13 else (128 - 13 * 262144) & 0xffffffff
            it += [f'v_add_u32 v{vWD}, {adv:#x}, v{vWD}', f'v_add_u32 v{vWD+1}, {adv:#x}, v{vWD+1}']
            return it
        for n in range(4):
            for it in wq_dma(n): e.item(it)
        e(f's_add_u32 m0, s{sW4k}, {SIDE}\ns_nop 0')
        for i in range(4):
            e.vm(f'buffer_load_dwordx4 v{vSD}, s[{sSrc}:{sSrc+3}], s{SSD+i} offen offset:{i*1024} lds', 'side')
        for ks in range(14):
            e.waitvm(f'x{ks}')
            if ks == 13: self.pf.stamp()
            for q in range(4):
                r = RAW + 4 * ks + q; d = 8 * ks + 2 * q
                e(f'v_lshlrev_b32 v{d}, 16, v{r}\nv_and_b32 v{d+1}, 0xffff0000, v{r}')
        T = 168
        for a in range(4): e(f'v_pk_add_f32 {V(T+2*a,2)}, {V(2*a,2)}, {V(8+2*a,2)}')
        for i in range(8, 56): e(f'v_pk_add_f32 {V(T+2*(i%4),2)}, {V(T+2*(i%4),2)}, {V(2*i,2)}')
        def fold():
            e(f'v_pk_add_f32 {V(T,2)}, {V(T,2)}, {V(T+2,2)}\nv_pk_add_f32 {V(T+4,2)}, {V(T+4,2)}, {V(T+6,2)}')
            e(f'v_pk_add_f32 {V(T,2)}, {V(T,2)}, {V(T+4,2)}\nv_add_f32 v{T}, v{T}, v{T+1}\ns_nop 1')
            e(f'v_add_f32_dpp v{T}, v{T}, v{T} quad_perm:[1,0,3,2] row_mask:0xf bank_mask:0xf\ns_nop 1')
            e(f'v_add_f32_dpp v{T}, v{T}, v{T} quad_perm:[2,3,0,1] row_mask:0xf bank_mask:0xf')
        fold()
        e(f'v_mul_f32 v{T+8}, {f2u(-1.0/448)}, v{T}')
        for i in range(56): e(f'v_pk_add_f32 {V(2*i,2)}, {V(2*i,2)}, {V(T+8,2)} op_sel_hi:[1,0]')
        for a in range(4): e(f'v_pk_mul_f32 {V(T+2*a,2)}, {V(2*a,2)}, {V(2*a,2)}')
        for i in range(4, 56): e(f'v_pk_fma_f32 {V(T+2*(i%4),2)}, {V(2*i,2)}, {V(2*i,2)}, {V(T+2*(i%4),2)}')
        fold()
        e(f'v_mov_b32 v{T+9}, {f2u(1e-5)}\nv_fmac_f32 v{T+9}, {f2u(1.0/448)}, v{T}\nv_rsq_f32 v{T+8}, v{T+9}')
        e('s_barrier')
        PB = T + 10
        PB = RAW + 24
        PB = 180
        def rdpar(ks, base):
            for h in range(2):
                e.ds(f'ds_read_b128 {V(base+4*h,4)}, v{vPA} offset:{ks*128+h*16}', f'p{ks}')
                e.ds(f'ds_read_b128 {V(base+8+4*h,4)}, v{vPA} offset:{1792+ks*128+h*16}', f'p{ks}')
        bufs = [180, NM]
        rdpar(0, bufs[0])
        for ks in range(14):
            if ks + 1 < 14: rdpar(ks + 1, bufs[(ks + 1) & 1])
            for q in range(4): e(f'v_pk_mul_f32 {V(8*ks+2*q,2)}, {V(8*ks+2*q,2)}, {V(T+8,2)} op_sel_hi:[1,0]')
            e.waitds(f'p{ks}')
            b = bufs[ks & 1]
            for q in range(4): e(f'v_pk_fma_f32 {V(8*ks+2*q,2)}, {V(8*ks+2*q,2)}, {V(b+8+2*q,2)}, {V(b+2*q,2)}')
            for q in range(4): e(f'v_cvt_pk_bf16_f32 v{RAW+4*ks+q}, v{8*ks+2*q}, v{8*ks+2*q+1}')
            e.ds(f'ds_write_b128 v{vHW}, {V(RAW+4*ks,4)} offset:{ks*1024}', 'hw')
        e.waitds0()
        e('s_barrier')
        for ks in range(14):
            for g in range(4):
                e.ds(f'ds_read_b128 {A((ks*4+g)*4,4)}, v{vHR} offset:{(g*14+ks)*1024}', 'hr')
        e.waitvm('side')
        for k in range(4):
            for tt in range(2):
                e.ds(f'ds_read_b64_tr_b16 {V(160+4*k+2*tt,2)}, v{vSR+k} offset:{tt*2048}', 'sr')
        e.waitds0()
        e('s_barrier')
        for k in range(4):
            e.vm(f'buffer_store_dwordx4 {V(160+4*k,4)}, v{vLL}, s[{sDst}:{sDst+3}], s{SSD+4+k} offen', 'sst')
        self.pf.stamp()
        WF = 128
        def wq_reads(n):
            it = []
            for db in range(4):
                for tt in range(2):
                    it.append(('ds', f'ds_read_b64_tr_b16 {V(WF+16*(n&1)+4*db+2*tt,2)}, v{vWA+db} offset:{(n%4)*4096+tt*512}', f'wr{n}'))
            return it
        def post(cs):
            it = []; t = 176
            base = f'v{vQW}'
            for g in range(4):
                for db in range(4):
                    a = 64 * cs + (db * 4 + g) * 4
                    tt = t + 2 * ((g * 4 + db) % 4)
                    it.append(f'v_mul_f32 v{a}, s{sQS}, v{a}'); it.append(f'v_mul_f32 v{a+1}, s{sQS}, v{a+1}')
                    it.append(f'v_mul_f32 v{a+2}, s{sQS}, v{a+2}'); it.append(f'v_mul_f32 v{a+3}, s{sQS}, v{a+3}')
                    it.append(f'v_cvt_pk_bf16_f32 v{tt}, v{a}, v{a+1}'); it.append(f'v_cvt_pk_bf16_f32 v{tt+1}, v{a+2}, v{a+3}')
                    it.append(('ds', f'ds_write_b64 v{212+cs}, {V(tt,2)} offset:{(g*2+(db>>1))*1024+(db&1)*512}', 'qw'))
            return it
        e(f's_lshl_b32 s{sT2}, s{sw}, 13\ns_add_u32 s{sT2}, s{sT2}, {SPARE}\nv_add_u32 v212, s{sT2}, v{vQW}\nv_add_u32 v213, s{sRing}, v{vQW}')
        kdma = []
        for sl in range(2):
            x = self.kv_dma('K', sl); kdma += [x[:6], x[6:]]
        e.waitvm('wq0')
        for it in wq_reads(0): e.item(it)
        post0 = post(0)
        for n in range(28):
            cs, ks = divmod(n, 14)
            fill = []
            if n + 1 < 28: fill += [('wvm', f'wq{n+1}')] + wq_reads(n + 1)
            if n + 4 < 28: fill += wq_dma(n + 4)
            if kdma and n % 2 == 1: fill += kdma.pop(0)
            if n >= 15 and post0:
                fill += post0[:10]; post0 = post0[10:]
            e.waitds(f'wr{n}')
            nf = len(fill); k = 0; done = 0
            for db in range(4):
                for g in range(4):
                    a = 64 * cs + (db * 4 + g) * 4
                    c = '0' if ks == 0 else V(a, 4)
                    e(f'v_mfma_f32_16x16x32_bf16 {V(a,4)}, {V(WF+16*(n&1)+4*db,4)}, {A((ks*4+g)*4,4)}, {c}')
                    k += 1
                    while done < (nf * k + 15) // 16 and done < nf:
                        e.item(fill[done]); done += 1
        assert not kdma and not post0
        self.pf.stamp()
        e('s_nop 7')
        for it in post(1): e.item(it)
        e.waitds0()
        e.waitvm('K0', 'K1')
        e('s_barrier')
        e(f's_xor_b32 s{sT2}, s{sw}, 2\ns_lshl_b32 s{sT3}, s{sT2}, 13\ns_add_u32 s{sT3}, s{sT3}, {SPARE}\nv_add_u32 v202, s{sT3}, v{vLL}')
        e(f's_lshl_b32 s{sT3}, s{sT2}, 14\ns_add_u32 s{sT3}, s{sT3}, {VBASE}\nv_add_u32 v203, s{sT3}, v{vLL}')
        e(f's_lshl_b32 s{sT3}, s{sw}, 13\ns_add_u32 s{sT3}, s{sT3}, {SPARE}\nv_add_u32 v200, s{sT3}, v{vLL}\nv_add_u32 v201, s{sRing}, v{vLL}')
        for src in range(4):
            for p in range(2):
                for g in range(4):
                    e.ds(f'ds_read_b128 {V(Q+32*g+4*(2*src+p),4)}, v{200+src} offset:{(g*2+p)*1024}', 'qr')
        e.waitds0()
        e('s_barrier')
        for it in self.kv_dma('V', 0): e.item(it)

    def kv_dma(self, kind, slot, tag=None):
        srd_, vreg, base = (sK, DK, KSLOT[slot]) if kind == 'K' else (sV, DV, VBASE + KSLOT[slot])
        tag = tag or f'{kind}{slot}'
        it = []
        for h in range(2):
            it.append(f's_add_u32 m0, s{sW4k}, {base + h*16384}')
            it.append('s_nop 0')
            for i in range(4):
                it.append(('vm', f'buffer_load_dwordx4 v{vreg}, s[{srd_}:{srd_+3}], s{(SO0, SO1)[h]+i} offen offset:{i*1024} lds', tag))
        it.append(f'v_add_u32 v{vreg}, 0x8000, v{vreg}')
        it.append(f'v_and_b32 v{vreg}, 0xfffff, v{vreg}')
        return it

    def reads(self, kind, slot, i):
        f = FR + 4 * (i % 4)
        if kind == 'K':
            t, s = divmod(i, 8); u, b = divmod(s, 2)
            return [('ds', f'ds_read_b128 {V(f,4)}, v{KA+b} offset:{KSLOT[slot]+u*4096+t*2048}', f'K{i}')]
        u, k = divmod(i, 4)
        return [('ds', f'ds_read_b64_tr_b16 {V(f+2*tt,2)}, v{VA+k} offset:{KSLOT[slot]+u*4096+tt*2048}', f'V{i}') for tt in range(2)]

    def mfma(self, kind, i, g, par, first):
        f = FR + 4 * (i % 4)
        if kind == 'K':
            t, s = divmod(i, 8); d = Sr + 16 * t + 4 * g
            c = V(d, 4) if s else ('0' if first else V(NM + 4 * g, 4))
            return f'v_mfma_f32_16x16x32_bf16 {V(d,4)}, {V(f,4)}, {V(Q+32*g+4*s,4)}, {c}'
        d = 16 * i + 4 * g
        c = '0' if first else A(d, 4)
        return f'v_mfma_f32_16x16x32_bf16 {A(d,4)}, {V(f,4)}, {V(P+16*par+4*g,4)}, {c}'

    def softmax_items(self, pn, t0slot, t1slot):
        it = []
        pool = [TM, TM + 2, XT, XT + 2, XT + 4, XT + 6]
        users = {}; lastadd = {}
        def add(txt, cost, early, deps=(), gdeps=()):
            it.append(dict(txt=txt, cost=cost, early=early, deps=list(deps), gdeps=list(gdeps))); return len(it) - 1
        for q in range(16):
            t, r = divmod(q, 8); g, h = divmod(r, 2)
            s = Sr + 16 * t + 4 * g + 2 * h; tm = pool[q % len(pool)]
            early = (t0slot if t == 0 else t1slot) + g
            war = users.get(tm, [])
            x0 = add(f'v_exp_f32 v{tm}, v{s}', 8, early, war)
            x1 = add(f'v_exp_f32 v{tm+1}, v{s+1}', 8, early, war)
            c = add(f'v_cvt_pk_bf16_f32 v{P+16*pn+4*g+2*t+h}, v{tm}, v{tm+1}', 4, early, (), [x0, x1])
            if t == 0 and h == 0:
                a1 = add(f'v_add_f32 v{PS+g}, v{tm}, v{tm+1}', 4, early, (), [x0, x1]); us = [c, a1]
            else:
                a0 = add(f'v_add_f32 v{PS+g}, v{PS+g}, v{tm}', 4, early, [lastadd[g]], [x0])
                a1 = add(f'v_add_f32 v{PS+g}, v{PS+g}, v{tm+1}', 4, early, [a0], [x1]); us = [c, a0, a1]
            lastadd[g] = a1; users[tm] = us
        m0 = add(f'v_max3_f32 v{CK}, v{PS}, v{PS+1}, v{PS+2}', 4, 0, [lastadd[0], lastadd[1], lastadd[2]])
        m1 = add(f'v_max_f32 v{CK}, v{CK}, v{PS+3}', 4, 0, [m0, lastadd[3]])
        add(f'v_cmp_nge_f32 vcc, s{sTHR}, v{CK}', 4, 0, [m1])
        return it

    def run_phases(self, phases, valu, ladd=True):
        e = self.e
        n = 64 * len(phases)
        gaps = [[] for _ in range(n)]; used = [0] * n
        def put(s, it, c, front=False):
            if front: gaps[s].insert(0, it)
            else: gaps[s].append(it)
            used[s] += c
        wp = self.waitper
        for pi, ph in enumerate(phases):
            o = 64 * pi
            for i in range(16):
                j = i + 4
                rd = self.reads(ph['kind'], ph['slot'], j) if j < 16 else (self.reads(ph['next'][0], ph['next'][1], j - 16) if ph['next'] else [])
                for r in rd: put(o + 4 * i + 3, r, 4)
                if i + 1 < 16 and (i + 1) % wp == 0:
                    w = ('wds', f"{ph['kind']}{min(15, i + wp)}")
                    put(o + 4 * i + (3 if len(rd) < 2 else 2), w, 4)
            dm = [x for x in ph['dma'] if x != 's_nop 0']
            k = 0
            for x in dm:
                if isinstance(x, tuple): put(o + 4 * k + 1, x, 8); k += 1
                else: put(o + 4 * k, x, 4)
        if ladd:
            for g in range(4): put(4 * g + 2, f'v_add_f32 v{LS+g}, v{LS+g}, v{PS+g}', 4, True)
        for pi in range(len(phases)): used[64 * pi + 63] += 8
        place = [None] * len(valu)
        over = 0
        for s in range(n):
            prog = True
            while prog:
                prog = False
                for k, v in enumerate(valu):
                    if place[k] is not None or v['early'] > s: continue
                    if any(place[d] is None for d in v['deps']) or any(place[d] is None or place[d] >= s for d in v['gdeps']): continue
                    left = sum(x['cost'] for kk, x in enumerate(valu) if place[kk] is None)
                    room = sum(max(0, 8 - used[z]) for z in range(s, n - 1))
                    cap = 8 if left <= room else 12
                    if used[s] + v['cost'] > cap: continue
                    place[k] = s; over += max(0, used[s] + v['cost'] - 8) - max(0, used[s] - 8)
                    if gaps[s] and isinstance(gaps[s][-1], tuple) and gaps[s][-1][0] == 'wds':
                        gaps[s].insert(len(gaps[s]) - 1, v['txt']); used[s] += v['cost']
                    else: put(s, v['txt'], v['cost'])
                    prog = True; break
        assert all(p is not None for p in place), [v['txt'] for v, p in zip(valu, place) if p is None]
        if valu: print('sched: overflow cycles', over, 'last valu slot', max(place))
        for pi, ph in enumerate(phases):
            for x in ph.get('pre', []): e.item(x)
            e.waitvm(*ph['wait'])
            e('s_barrier')
            if ph.get('fresh'):
                for i in range(4):
                    for it in self.reads(ph['kind'], ph['slot'], i): e.item(it)
            e.waitds(f"{ph['kind']}{wp-1}")
            for k in range(64):
                e(self.mfma(ph['kind'], k // 4, k % 4, ph['par'], ph['first']))
                for x in gaps[64 * pi + k]: e.item(x)

    def check(self, pn):
        k = self.nstub; self.nstub += 1
        self.e(f's_cbranch_vccnz L_stub{k}\nL_back{k}:')
        self.stubs.append(f'L_stub{k}:\ns_call_b64 s[{sRet}:{sRet+1}], L_rare{pn}\ns_branch L_back{k}')

    def iteration(self, par, kdma, first=False, vdma=True, wait_a=None, wait_b=None, nextA=True):
        pa = dict(kind='K', slot=1 - par, par=par, first=False, next=('V', par),
                  dma=self.kv_dma('V', 1 - par, 'Vn') if vdma else [], wait=wait_a or ['Vn'])
        pb = dict(kind='V', slot=par, par=par, first=first, next=('K', par) if nextA else None,
                  dma=kdma, wait=wait_b or ['Kn'])
        self.run_phases([pa, pb], self.softmax_items(1 - par, 34, 66), ladd=not first)
        self.check(1 - par)

    def resoftmax(self, pn, first):
        e = self.e
        D = XT; T = XT + 4
        for g in range(4):
            s0 = Sr + 4 * g; s1 = Sr + 16 + 4 * g
            e(f'v_max3_f32 v{D+g}, v{s0}, v{s0+1}, v{s0+2}\nv_max3_f32 v{D+g}, v{D+g}, v{s0+3}, v{s1}')
            e(f'v_max3_f32 v{D+g}, v{D+g}, v{s1+1}, v{s1+2}\nv_max_f32 v{D+g}, v{D+g}, v{s1+3}')
        xop_grp_multi(e, [D + g for g in range(4)], [T + g for g in range(4)], 'v_max_f32')
        if self.bias:
            for g in range(4): e(f'v_add_f32 v{D+g}, {f2u(self.bias)}, v{D+g}')
        if first:
            for g in range(4):
                for r in range(4): e(f'v_sub_f32 v{NM+4*g+r}, 0, v{D+g}')
        else:
            for g in range(4): e(f'v_max_f32 v{D+g}, 0, v{D+g}')
            for g in range(4):
                for r in range(4): e(f'v_sub_f32 v{NM+4*g+r}, v{NM+4*g+r}, v{D+g}')
            for g in range(4): e(f'v_exp_f32 v{T+g}, -v{D+g}')
            e('s_nop 0')
            for g in range(4): e(f'v_mul_f32 v{LS+g}, v{LS+g}, v{T+g}')
            for db in range(16):
                for g in range(4):
                    a = 16 * db + 4 * g
                    for r in range(4): e(f'v_accvgpr_read_b32 v{TM+r}, a{a+r}')
                    for r in range(4): e(f'v_mul_f32 v{TM+r}, v{TM+r}, v{T+g}')
                    for r in range(4): e(f'v_accvgpr_write_b32 a{a+r}, v{TM+r}')
        for g in range(4):
            for t in range(2):
                s = Sr + 16 * t + 4 * g
                for r in range(4): e(f'v_sub_f32 v{TM+r}, v{s+r}, v{D+g}')
                for r in range(4): e(f'v_exp_f32 v{TM+r}, v{TM+r}')
                e('s_nop 0')
                e(f'v_cvt_pk_bf16_f32 v{P+16*pn+4*g+2*t}, v{TM}, v{TM+1}\nv_cvt_pk_bf16_f32 v{P+16*pn+4*g+2*t+1}, v{TM+2}, v{TM+3}')
                if t == 0: e(f'v_add_f32 v{PS+g}, v{TM}, v{TM+1}')
                else: e(f'v_add_f32 v{PS+g}, v{PS+g}, v{TM}\nv_add_f32 v{PS+g}, v{PS+g}, v{TM+1}')
                e(f'v_add_f32 v{PS+g}, v{PS+g}, v{TM+2}\nv_add_f32 v{PS+g}, v{PS+g}, v{TM+3}')

    def wo_dma(self, n, tag):
        base = (n % 5) * 32768
        it = []
        for u in range(7):
            it.append(f's_add_u32 m0, s{sT1}, {base + u*4096 - u*128}')
            it.append('s_nop 0')
            it.append(('vm', f'buffer_load_dwordx4 v{XT+7}, s[{sWo}:{sWo+3}], s{sWoK} offen offset:{u*128} lds', tag))
        it.append(f's_add_u32 s{sWoK}, s{sWoK}, {32*896}')
        return it

    def mainloop(self):
        e = self.e
        for i in range(3):
            for it in self.reads('K', 0, i): e.item(it)
        ph = dict(kind='K', slot=0, par=0, first=True, next=None, dma=[], wait=[])
        e.waitds('K0')
        for k in range(64):
            i, g = divmod(k, 4)
            if g == 0: e.waitds(f'K{i}')
            e(self.mfma('K', i, g, 0, True))
            if g == 0 and i + 3 < 16:
                for it in self.reads('K', 0, i + 3): e.item(it)
        e('s_barrier')
        for it in self.kv_dma('K', 0, 'Kn'): e.item(it)
        for i in range(4):
            for it in self.reads('K', 1, i): e.item(it)
        self.resoftmax(0, True)
        for g in range(4): e(f'v_mov_b32 v{LS+g}, v{PS+g}')
        if self.dbg == 's': self.dump([('v', Sr + 4 * i) for i in range(8)] + [('v', P + 4 * i) for i in range(4)] + [('v', NM + 4 * i) for i in range(4)] + [('v', LS)])
        self.pf.stamp()
        self.iteration(0, self.kv_dma('K', 1, 'Kn'), first=True, wait_a=['V0'])
        e(f's_mov_b32 s{scnt}, 14')
        st = (list(e.vmq), list(e.dsq))
        e('.p2align 6\nL_k2_loop:')
        self.iteration(1, self.kv_dma('K', 0, 'Kn'))
        self.iteration(0, self.kv_dma('K', 1, 'Kn'))
        assert st == (e.vmq, e.dsq), (st, e.vmq, e.dsq)
        e(f's_sub_u32 s{scnt}, s{scnt}, 1\ns_cmp_lg_u32 s{scnt}, 0\ns_cbranch_scc1 L_k2_loop')
        e(f'v_mbcnt_lo_u32_b32 v{XT+4}, -1, 0\nv_mbcnt_hi_u32_b32 v{XT+4}, -1, v{XT+4}')
        e(f'v_lshrrev_b32 v{XT+5}, 3, v{XT+4}\nv_and_b32 v{XT+6}, 0xf0, v{DK}')
        e(f's_lshl_b32 s{sT1}, s{sw}, 3\nv_add_u32 v{XT+5}, s{sT1}, v{XT+5}\nv_mul_u32_u24 v{XT+5}, 896, v{XT+5}')
        e(f'v_and_b32 v{XT+6}, 0x70, v{XT+6}\nv_add_u32 v253, v{XT+5}, v{XT+6}\ns_lshl_b32 s{sT1}, s{sw}, 10\ns_mov_b32 s{sWoK}, 0')
        self.WOD = 253
        wo = lambda n: [x if not isinstance(x, tuple) else (x[0], x[1].replace(f'v{XT+7},', 'v253,'), x[2]) for x in self.wo_dma(n, f'wo{n}')]
        self.wo = wo
        self.iteration(1, wo(0))
        self.iteration(0, wo(1), wait_b=['Kn'], nextA=False)
        pb = dict(kind='V', slot=1, par=1, first=False, next=None, dma=[], wait=['Vn'], fresh=True)
        self.run_phases([pb], [], ladd=True)

    def epilogue(self):
        e = self.e
        LL, PA, T = 128, 129, 132
        self.pf.stamp()
        WOWN, WOTH = 140, 144
        e(f'v_mbcnt_lo_u32_b32 v{LL}, -1, 0\nv_mbcnt_hi_u32_b32 v{LL}, -1, v{LL}\nv_lshlrev_b32 v{LL+2}, 3, v{LL}\nv_lshlrev_b32 v{LL}, 4, v{LL}')
        xop_grp_multi(e, [LS + g for g in range(4)], [T + g for g in range(4)], 'v_add_f32')
        e(f's_lshl_b32 s{sT2}, s{sw}, 11\ns_add_u32 s{sT2}, s{sT2}, {SPARE}\nv_add_u32 v{LL+3}, s{sT2}, v{LL+2}')
        e(f's_xor_b32 s{sT2}, s{sT2}, 4096\nv_add_u32 v{LL+2}, s{sT2}, v{LL+2}')
        for g in range(4):
            e(f'v_mov_b32 v{T+2*g}, v{NM+4*g}\nv_mov_b32 v{T+2*g+1}, v{LS+g}')
            e.ds(f'ds_write_b64 v{LL+3}, {V(T+2*g,2)} offset:{g*512}', 'mlw')
        e.waitds0()
        e('s_barrier')
        ML = 148
        for g in range(4): e.ds(f'ds_read_b64 {V(ML+2*g,2)}, v{LL+2} offset:{g*512}', 'mlr')
        e(f'v_add_u32 v{PA}, s{sRing}, v{LL}\ns_xor_b32 s{sT2}, s{sRing}, 32768\nv_add_u32 v{PA+1}, s{sT2}, v{LL}')
        def owrite(r):
            for x in range(16):
                e.ds(f'ds_write_b128 v{PA}, {A(128+64*r+4*x,4)} offset:{x*1024}', 'ow')
        owrite(0)
        e.waitds('mlr')
        for g in range(4):
            e(f'v_min_f32 v{T}, v{NM+4*g}, v{ML+2*g}\nv_sub_f32 v{T+1}, v{T}, v{NM+4*g}\nv_sub_f32 v{T+2}, v{T}, v{ML+2*g}')
            e(f'v_exp_f32 v{T+1}, v{T+1}\nv_exp_f32 v{T+2}, v{T+2}\ns_nop 0')
            e(f'v_mul_f32 v{T+3}, v{T+1}, v{LS+g}\nv_fmac_f32 v{T+3}, v{T+2}, v{ML+2*g+1}\nv_rcp_f32 v{T+3}, v{T+3}\ns_nop 0')
            e(f'v_mul_f32 v{WOWN+g}, v{T+1}, v{T+3}\nv_mul_f32 v{WOTH+g}, v{T+2}, v{T+3}')
        OWN = 64
        PK = 160
        e(f's_lshl_b32 s{sT2}, s{sw}, 13\ns_add_u32 s{sT3}, s{sT2}, {SPARE}\nv_add_u32 v156, s{sT3}, v{LL}\ns_add_u32 s{sT3}, s{sT2}, {VBASE}\nv_add_u32 v157, s{sT3}, v{LL}')
        for r in range(2):
            for x in range(64): e(f'v_accvgpr_read_b32 v{OWN+x}, a{64*r+x}')
            for x in range(64): e(f'v_mul_f32 v{OWN+x}, v{OWN+x}, v{WOWN+(x//4)%4}')
            e.waitds0()
            e('s_barrier')
            for x in range(16): e.ds(f'ds_read_b128 {V(4*x,4)}, v{PA+1} offset:{x*1024}', f'or{x}')
            for x in range(16):
                e.waitds(f'or{x}')
                for y in range(4): e(f'v_fmac_f32 v{OWN+4*x+y}, v{4*x+y}, v{WOTH+x%4}')
            e('s_barrier')
            if r == 0: owrite(1)
            for x in range(16):
                db, g = divmod(x, 4)
                pk = PK + ((db >> 1) * 4 + g) * 4 + (db & 1) * 2
                e(f'v_cvt_pk_bf16_f32 v{pk}, v{OWN+4*x}, v{OWN+4*x+1}\nv_cvt_pk_bf16_f32 v{pk+1}, v{OWN+4*x+2}, v{OWN+4*x+3}')
            for x in range(8): e.ds(f'ds_write_b128 v{156+r}, {V(PK+4*x,4)} offset:{x*1024}', 'obw')
        e.waitds0()
        e('s_barrier')
        e(f's_lshr_b32 s{sT2}, s{sw}, 1\ns_lshl_b32 s{sT2}, s{sT2}, 11\ns_add_u32 s{sT3}, s{sT2}, {SPARE}\nv_add_u32 v156, s{sT3}, v{LL}\ns_add_u32 s{sT3}, s{sT2}, {VBASE}\nv_add_u32 v157, s{sT3}, v{LL}')
        for ks in range(16):
            hd, kh, r, qq = ks >> 3, (ks >> 2) & 1, (ks >> 1) & 1, ks & 1
            for gg in range(2):
                e.ds(f'ds_read_b128 {A((ks*2+gg)*4,4)}, v{156+r} offset:{(hd+2*kh)*8192+(qq*4+gg)*1024}', 'obr')
        WA = 164
        e(f's_and_b32 s{sT2}, s{sw}, 1\ns_lshr_b32 s{sT0}, s{sw}, 1\ns_lshl_b32 s{sT0}, s{sT0}, 14\ns_add_u32 s{sT0}, s{sT0}, {VBASE}')
        e(f's_cmp_eq_u32 s{sT2}, 1\ns_cselect_b64 s[98:99], -1, 0')
        for k in range(4):
            e(f'v_subrev_u32 v{T}, s{sT0}, v{VA+k}\nv_subrev_u32 v{T+1}, s{sT0}, v{VA+(k+2)%4}\nv_add_u32 v{T+1}, {(3 if k < 2 else 4)*4096}, v{T+1}')
            e(f'v_cndmask_b32 v{WA+k}, v{T}, v{T+1}, s[98:99]\nv_add_u32 v{WA+4+k}, 0x10000, v{WA+k}\nv_add_u32 v{WA+8+k}, 0x20000, v{WA+k}')
        e.waitds0()
        e.waitvm('wo0', 'wo1')
        e('s_barrier')
        for n in (2, 3):
            for it in self.wo(n): e.item(it)
        NF = 8; WF = 176
        self.pf.stamp()
        def rd(n, i):
            sl = n % 5; f = WF + 4 * ((n * 14 + i) % NF)
            return [('ds', f'ds_read_b64_tr_b16 {V(f+2*tt,2)}, v{WA+4*(sl//2)+i%4} offset:{(sl&1)*32768+(i//4)*4096+tt*2048}', f'a{n}_{i}') for tt in range(2)]
        PD = 6
        for i in range(PD):
            for it in rd(0, i): e.item(it)
        for n in range(16):
            if n > 0:
                if n + 1 < 16: e.waitvm(f'wo{n+1}')
                e('s_barrier')
            dl = [x for x in self.wo(n + 4) if x != 's_nop 0'] if n + 4 < 16 else []
            for i in range(14):
                e.waitds(f'a{n}_{i}')
                f = WF + 4 * ((n * 14 + i) % NF)
                j = i + PD
                nxt = rd(n, j) if j < 14 else (rd(n + 1, j - 14) if n + 1 < 16 else [])
                for gg in range(2):
                    d = (i * 2 + gg) * 4
                    c = '0' if n == 0 else V(d, 4)
                    e(f'v_mfma_f32_16x16x32_bf16 {V(d,4)}, {V(f,4)}, {A((n*2+gg)*4,4)}, {c}')
                    if gg < len(nxt): e.item(nxt[gg])
                    if gg == 1 and dl:
                        e.item(dl.pop(0))
                        if dl and not isinstance(dl[0], tuple) and len(dl) == 1: e.item(dl.pop(0))
            assert not dl, dl
        e('s_nop 7')
        self.pf.stamp()
        e(f's_lshr_b32 s{sT2}, s{sw}, 1\ns_lshl_b32 s{sT2}, s{sT2}, 1\ns_lshl_b32 s{sT3}, s{stb}, 2\ns_add_u32 s{sT2}, s{sT2}, s{sT3}\ns_mul_i32 s{sT2}, s{sT2}, 14336')
        e(f's_and_b32 s{sT3}, s{sw}, 1\ns_mul_i32 s{sT3}, s{sT3}, 7168\ns_add_u32 s{sT2}, s{sT2}, s{sT3}\nv_add_u32 v{PA}, s{sT2}, v{LL}\nv_add_u32 v{PA+1}, 14336, v{PA}')
        e(f's_mov_b32 s{sT0}, 4096')
        for p in range(7):
            for gg in range(2):
                a0 = (4 * p + gg) * 4; a1 = (4 * p + 2 + gg) * 4; o = WF + 4 * (2 * p + gg)
                e(f'v_cvt_pk_bf16_f32 v{o}, v{a0}, v{a0+1}\nv_cvt_pk_bf16_f32 v{o+1}, v{a0+2}, v{a0+3}')
                e(f'v_cvt_pk_bf16_f32 v{o+2}, v{a1}, v{a1+1}\nv_cvt_pk_bf16_f32 v{o+3}, v{a1+2}, v{a1+3}')
                so = '0' if p < 4 else f's{sT0}'
                e.vm(f'buffer_store_dwordx4 {V(o,4)}, v{PA+gg}, s[{sPart}:{sPart+3}], {so} offen offset:{(p%4)*1024}', f'st{2*p+gg}')
        e.waitvm0()
        self.pf.flush(DBG, sDst, sT2)
        e('L_k2_done:\ns_endpgm')
        for s in self.stubs: e(s)
        for pn in range(2):
            e(f'L_rare{pn}:\ns_nop 7')
            self.resoftmax(pn, False)
            e(f's_nop 1\ns_setpc_b64 s[{sRet}:{sRet+1}]')

    def dump(self, regs, kind='v'):
        e = self.e
        e('s_waitcnt vmcnt(0) lgkmcnt(0)\ns_nop 7\ns_nop 7')
        e(f's_lshl_b32 s{sT2}, s2, 2\ns_add_u32 s{sT2}, s{sT2}, s{sw}\ns_lshl_b32 s{sT2}, s{sT2}, 16\ns_add_u32 s{sT2}, s{sT2}, {DBG}')
        srd_off(e, sDst, 86, 87, f's{sT2}', 65536)
        e('v_mbcnt_lo_u32_b32 v255, -1, 0\nv_mbcnt_hi_u32_b32 v255, -1, v255\nv_lshlrev_b32 v255, 4, v255')
        for i, (k, r) in enumerate(regs):
            e(f's_mov_b32 s{sT2}, {i*1024}')
            e(f'buffer_store_dwordx4 {k}[{r}:{r+3}], v255, s[{sDst}:{sDst+3}], s{sT2} offen')
        e('s_waitcnt vmcnt(0)\ns_endpgm')

    def gen(self):
        self.setup(); self.prologue()
        if self.dbg == 'q': self.dump([('v', 4 * i) for i in range(32)])
        if self.dbg == 'h': self.dump([('a', 4 * i) for i in range(56)])
        self.mainloop()
        if self.dbg == 'o': self.dump([('a', 4 * i) for i in range(32)] + [('v', NM + 4 * i) for i in range(4)] + [('v', LS)])
        self.epilogue()
        return self.e, descriptor(self.name, 512, 256), f'; @launch kernel={self.name} grid=(256,1,1) block=(256,1,1) lds=163840'
```

```python
from asmlib import *
from common import *

GC0 = -2.0 * 0.7978845608028654 * LOG2E
GC1 = GC0 * 0.044715

def gelu(e, regs, tmp, s0, s1):
    for r, t in zip(regs, tmp): e(f'v_mul_f32 v{t}, v{r}, v{r}')
    for r, t in zip(regs, tmp): e(f'v_fma_f32 v{t}, v{t}, s{s1}, v{s0}' if False else f'v_mul_f32 v{t}, s{s1}, v{t}')
    for r, t in zip(regs, tmp): e(f'v_add_f32 v{t}, s{s0}, v{t}')
    for r, t in zip(regs, tmp): e(f'v_mul_f32 v{t}, v{t}, v{r}')
    for r, t in zip(regs, tmp): e(f'v_exp_f32 v{t}, v{t}')
    if len(regs) < 2: e('s_nop 0')
    for r, t in zip(regs, tmp): e(f'v_add_f32 v{t}, 1.0, v{t}')
    for r, t in zip(regs, tmp): e(f'v_rcp_f32 v{t}, v{t}')
    if len(regs) < 2: e('s_nop 0')
    for r, t in zip(regs, tmp): e(f'v_mul_f32 v{r}, v{r}, v{t}')

def unpack(e, dst, src, n):
    for q in range(n):
        e(f'v_lshlrev_b32 v{dst+2*q}, 16, v{src+q}\nv_and_b32 v{dst+2*q+1}, 0xffff0000, v{src+q}')
def pack(e, dst, src, n):
    for q in range(n): e(f'v_cvt_pk_bf16_f32 v{dst+q}, v{src+2*q}, v{src+2*q+1}')

def wave_id(e, sw):
    e(f'v_lshrrev_b32 v1, 6, v0\nv_and_b32 v0, 63, v0\ns_nop 0\nv_readfirstlane_b32 s{sw}, v1')

def stats_exchange(e, vals, nval, T, vSW, vSR, off, nw, RB):
    e(f'v_pk_add_f32 {V(T,2)}, {V(vals,2)}, {V(vals+2,2)}\nv_pk_mul_f32 {V(T+2,2)}, {V(vals,2)}, {V(vals,2)}')
    e(f'v_pk_fma_f32 {V(T+2,2)}, {V(vals+2,2)}, {V(vals+2,2)}, {V(T+2,2)}')
    for i in range(2, nval // 2):
        e(f'v_pk_add_f32 {V(T,2)}, {V(T,2)}, {V(vals+2*i,2)}\nv_pk_fma_f32 {V(T+2,2)}, {V(vals+2*i,2)}, {V(vals+2*i,2)}, {V(T+2,2)}')
    e(f'v_add_f32 v{T}, v{T}, v{T+1}\nv_add_f32 v{T+1}, v{T+2}, v{T+3}')
    xop_grp_multi(e, [T, T + 1], [T + 2, T + 3], 'v_add_f32')
    if nw > 1:
        e.ds(f'ds_write_b64 v{vSW}, {V(T,2)} offset:{off}', 'sw')
        e.waitds0()
        e('s_barrier')
        for w in range(nw): e.ds(f'ds_read_b64 {V(RB+2*w,2)}, v{vSR} offset:{off+w*512}', 'sr')
        e.waitds0()
        e(f'v_pk_add_f32 {V(T,2)}, {V(RB,2)}, {V(RB+2,2)}')
        for w in range(2, nw): e(f'v_pk_add_f32 {V(T,2)}, {V(T,2)}, {V(RB+2*w,2)}')
    e(f'v_mul_f32 v{T+8}, {f2u(-1.0/448)}, v{T}\nv_mov_b32 v{T+9}, {f2u(1e-5)}\nv_fmac_f32 v{T+9}, {f2u(1.0/448)}, v{T+1}')
    e(f'v_fma_f32 v{T+9}, -v{T+8}, v{T+8}, v{T+9}\nv_max_f32 v{T+9}, {f2u(1e-5)}, v{T+9}\nv_rsq_f32 v{T+10}, v{T+9}\ns_nop 0')

def gen_k3(name='k3_mix1_kernel'):
    e = Emit(); header(e, name)
    sw, stg, snh = 40, 41, 42
    sP, sX, sM, sW, sO, sU = 4, 8, 12, 16, 20, 24
    e('s_cmp_ge_u32 s2, 256\ns_cbranch_scc1 L_k3_done')
    pf = Prof(e, 2, [70, 72, 74, 76, 78, 80], 62, sw); pf.stamp()
    e(f's_load_dwordx2 s[60:61], s[0:1], {A_X}\ns_load_dwordx2 s[62:63], s[0:1], {A_WS}')
    wave_id(e, sw)
    e(f's_bfe_u32 s{snh}, s2, 0x10003\ns_lshr_b32 s{stg}, s2, 4\ns_lshl_b32 s{stg}, s{stg}, 3\ns_and_b32 s3, s2, 7\ns_or_b32 s{stg}, s{stg}, s3')
    LL, XA, MA, XW, SW_, SR_, AW = 2, 3, 4, 5, 6, 7, 8
    e(f'v_lshlrev_b32 v{LL}, 4, v0')
    e(f's_mul_i32 s43, s{stg}, 14\ns_lshl_b32 s44, s{sw}, 1\ns_add_u32 s43, s43, s44\ns_lshl_b32 s43, s43, 10')
    e(f'v_lshrrev_b32 v10, 2, v0\nv_and_b32 v11, 3, v0\ns_lshl_b32 s44, s{stg}, 4\nv_add_u32 v12, s44, v10\nv_mul_u32_u24 v12, 896, v12')
    e(f's_lshl_b32 s44, s{sw}, 7\nv_lshl_add_u32 v12, v11, 4, v12\nv_add_u32 v{XA}, s44, v12')
    e(f'v_lshrrev_b32 v12, 4, v0\nv_lshlrev_b32 v12, 4, v12\nv_add_u32 v{MA}, s44, v12')
    XR = 16384; ST = XR + 14336
    e(f'v_and_b32 v12, 1, v11\nv_lshl_add_u32 v12, v12, 5, v10\nv_lshlrev_b32 v12, 4, v12\nv_lshrrev_b32 v13, 1, v11\nv_lshl_add_u32 v12, v13, 3, v12')
    e(f's_lshl_b32 s45, s{sw}, 11\ns_add_u32 s46, s45, {XR}\nv_add_u32 v{XW}, s46, v12\nv_add_u32 v9, s46, v{LL}')
    e(f'v_lshlrev_b32 v{SR_}, 3, v0\nv_add_u32 v{SR_}, {ST}, v{SR_}\ns_lshl_b32 s46, s{sw}, 9\nv_add_u32 v{SW_}, s46, v{SR_}')
    e(f'v_add_u32 v{AW}, s45, v{LL}')
    e('s_waitcnt lgkmcnt(0)')
    srd_off(e, sP, 62, 63, PART, 8 * FB)
    srd(e, sX, 60, 61, FB)
    srd_off(e, sM, 62, 63, MODF, 6 * 896)
    srd_off(e, sW, 62, 63, W1F, 448 * 896)
    e(f's_mul_i32 s46, s{snh}, {HH-X2}\ns_add_u32 s46, s46, {X2}')
    srd_off(e, sO, 62, 63, 's46', FB)
    srd_off(e, sU, 62, 63, UU, FB)
    XRAW, PR, PM = 12, 20, 84
    for k in range(2): e.vm(f'buffer_load_dwordx4 {V(XRAW+4*k,4)}, v{XA}, s[{sX}:{sX+3}], 0 offen offset:{k*64}', 'x')
    for p in range(8):
        if p: e(f's_add_u32 s43, s43, {FB}')
        for k in range(2): e.vm(f'buffer_load_dwordx4 {V(PR+8*p+4*k,4)}, v{LL}, s[{sP}:{sP+3}], s43 offen offset:{k*1024}', f'p{p}')
    for j, which in enumerate((2, 3, 4)):
        for k in range(2): e.vm(f'buffer_load_dwordx4 {V(PM+8*j+4*k,4)}, v{MA}, s[{sM}:{sM+3}], 0 offen offset:{which*896+k*64}', 'm')
    e(f's_mul_i32 s44, s{snh}, 14\ns_lshl_b32 s45, s{sw}, 1\ns_add_u32 s44, s44, s45\ns_mul_i32 s44, s44, 14336')
    e('s_add_u32 s45, s44, 14336')
    for ks in range(14):
        if ks and ks % 4 == 0: e('s_add_u32 s44, s44, 4096\ns_add_u32 s45, s45, 4096')
        for b in range(2):
            e.vm(f'buffer_load_dwordx4 {A(4*(b*14+ks),4)}, v{LL}, s[{sW}:{sW+3}], s{44+b} offen offset:{(ks%4)*1024}', f'w{b*14+ks}')
    e(f's_mov_b32 s50, {f2u(GC0)}\ns_mov_b32 s51, {f2u(GC1)}')
    e.waitvm('x')
    for k in range(2):
        e.ds(f'ds_write_b64 v{XW}, {V(XRAW+4*k,2)} offset:{k*1024}', 'xw')
        e.ds(f'ds_write_b64 v{XW}, {V(XRAW+4*k+2,2)} offset:{k*1024+256}', 'xw')
    e.waitds0()
    for k in range(2): e.ds(f'ds_read_b128 {V(XRAW+4*k,4)}, v9 offset:{k*1024}', 'xr')
    AC, T = 108, 124
    assert T + 16 <= 144
    e.waitvm('p0'); unpack(e, AC, PR, 8)
    for p in range(1, 8):
        e.waitvm(f'p{p}'); unpack(e, T, PR + 8 * p, 8)
        for i in range(8): e(f'v_pk_add_f32 {V(AC+2*i,2)}, {V(AC+2*i,2)}, {V(T+2*i,2)}')
    e.waitvm('m'); e.waitds0()
    pf.stamp()
    G = PR; XV = PR + 16; SB = PR + 32; CB = PR + 48
    unpack(e, G, PM, 8); unpack(e, XV, XRAW, 8); unpack(e, SB, PM + 8, 8); unpack(e, CB, PM + 16, 8)
    for i in range(8): e(f'v_pk_fma_f32 {V(AC+2*i,2)}, {V(AC+2*i,2)}, {V(G+2*i,2)}, {V(XV+2*i,2)}')
    X2P = XRAW; HP = PM
    pack(e, X2P, AC, 8); unpack(e, AC, X2P, 8)
    stats_exchange(e, AC, 16, T, SW_, SR_, 0, 7, PR)
    for i in range(8): e(f'v_pk_add_f32 {V(AC+2*i,2)}, {V(AC+2*i,2)}, {V(T+8,2)} op_sel_hi:[1,0]')
    for i in range(8): e(f'v_pk_mul_f32 {V(AC+2*i,2)}, {V(AC+2*i,2)}, {V(T+10,2)} op_sel_hi:[1,0]')
    for i in range(8): e(f'v_pk_fma_f32 {V(AC+2*i,2)}, {V(AC+2*i,2)}, {V(CB+2*i,2)}, {V(SB+2*i,2)}')
    pack(e, HP, AC, 8); unpack(e, AC, HP, 8)
    stats_exchange(e, AC, 16, T, SW_, SR_, 3584, 7, PR)
    for i in range(8): e(f'v_pk_add_f32 {V(AC+2*i,2)}, {V(AC+2*i,2)}, {V(T+8,2)} op_sel_hi:[1,0]')
    for i in range(8): e(f'v_pk_mul_f32 {V(AC+2*i,2)}, {V(AC+2*i,2)}, {V(T+10,2)} op_sel_hi:[1,0]')
    AP = PM + 8
    pack(e, AP, AC, 8)
    for k in range(2): e.ds(f'ds_write_b128 v{AW}, {V(AP+4*k,4)} offset:{k*1024}', 'aw')
    e(f's_cmp_eq_u32 s{snh}, 0\ns_cselect_b64 vcc, -1, 0')
    for i in range(8): e(f'v_cndmask_b32 v{X2P+i}, v{HP+i}, v{X2P+i}, vcc')
    e(f's_sub_u32 s43, s43, {7*FB}')
    for k in range(2): e.vm(f'buffer_store_dwordx4 {V(X2P+4*k,4)}, v{LL}, s[{sO}:{sO+3}], s43 offen offset:{k*1024}', 'st')
    e.waitds0()
    e('s_barrier')
    B = PR
    pf.stamp()
    for ks in range(14): e.ds(f'ds_read_b128 {V(B+4*ks,4)}, v{LL} offset:{ks*1024}', f'b{ks}')
    for ks in range(14):
        e.waitds(f'b{ks}')
        for b in range(2):
            e.waitvm(f'w{b*14+ks}')
            c = '0' if ks == 0 else V(AC + 4 * b, 4)
            e(f'v_mfma_f32_16x16x32_bf16 {V(AC+4*b,4)}, {A(4*(b*14+ks),4)}, {V(B+4*ks,4)}, {c}')
    e(f's_mul_i32 s44, s{stg}, 14\ns_mul_i32 s45, s{snh}, 7\ns_add_u32 s44, s44, s45\ns_add_u32 s44, s44, s{sw}\ns_lshl_b32 s44, s44, 10\ns_nop 3')
    gelu(e, list(range(AC, AC + 8)), list(range(T, T + 8)), 50, 51)
    pack(e, T + 8, AC, 4)
    e(f'buffer_store_dwordx4 {V(T+8,4)}, v{LL}, s[{sU}:{sU+3}], s44 offen\ns_waitcnt vmcnt(0)')
    pf.flush(DBG, 4, 47)
    e('L_k3_done:\ns_endpgm')
    return e, descriptor(name, 256, 144), f'; @launch kernel={name} grid=(256,1,1) block=(448,1,1) lds={ST+7168}'

def gen_k4(name='k4_mix2_kernel'):
    e = Emit(); header(e, name)
    sw, stb, su = 40, 41, 42
    sU, sW, sH, sO = 4, 8, 12, 16
    e('s_cmp_ge_u32 s2, 224\ns_cbranch_scc1 L_k4_done')
    pf = Prof(e, 3, [70, 72, 74, 76, 78, 80], 62, sw); pf.stamp()
    e(f's_load_dwordx2 s[62:63], s[0:1], {A_WS}')
    wave_id(e, sw)
    e(f's_mul_hi_u32 s{stb}, s2, {(2**32+6)//7}\ns_mul_i32 s{su}, s{stb}, 7\ns_sub_u32 s{su}, s2, s{su}')
    LL, SH, HA = 2, 4, 8
    e(f'v_lshlrev_b32 v{LL}, 4, v0\nv_and_b32 v10, 15, v0\nv_and_b32 v11, 48, v0')
    e(f's_lshl_b32 s43, s{stb}, 6\ns_lshl_b32 s44, s{sw}, 4\ns_add_u32 s43, s43, s44\nv_add_u32 v10, s43, v10\nv_mov_b32 v15, {FB}')
    for i, d in enumerate((-1, 1, -2, 2)):
        e(f'v_add_u32 v12, {d}, v10\nv_lshrrev_b32 v13, 4, v12\nv_and_b32 v13, 0xff, v13\nv_mul_u32_u24 v13, 14336, v13')
        e(f'v_and_b32 v14, 15, v12\nv_add_u32 v14, v14, v11\nv_lshl_add_u32 v13, v14, 4, v13\nv_cmp_gt_i32 vcc, 0, v12\ns_nop 1\nv_cndmask_b32 v{SH+i}, v13, v15, vcc')
    e(f's_mul_i32 s43, s{stb}, 56\ns_lshl_b32 s44, s{su}, 1\ns_add_u32 s43, s43, s44\ns_lshr_b32 s44, s{sw}, 1\ns_add_u32 s43, s43, s44\ns_lshl_b32 s43, s43, 10')
    e(f's_and_b32 s44, s{sw}, 1\ns_lshl_b32 s44, s44, 3\ns_add_u32 s43, s43, s44\nv_add_u32 v{HA}, s43, v{LL}')
    for g in range(4): e(f's_mov_b32 s{52+g}, {g*14336}')
    for j in range(4): e(f's_mov_b32 s{56+j}, {j*4096}')
    e(f's_lshl_b32 s45, s{sw}, 14')
    e('s_waitcnt lgkmcnt(0)')
    srd_off(e, sU, 62, 63, UU, FB)
    srd_off(e, sW, 62, 63, W2F, 448 * 896)
    srd_off(e, sH, 62, 63, HH, FB)
    srd_off(e, sO, 62, 63, X1, FB)
    sg = lambda nb: nb // 7
    for ks in range(14):
        if ks % 4 == 0: e(f's_add_u32 m0, s45, {ks*1024}\ns_nop 0')
        e.vm(f'buffer_load_dwordx4 v{SH+sg(2*ks)}, s[{sU}:{sU+3}], s{56+ks//4} offen offset:{(ks%4)*1024} lds', 'u')
    for x, ks in enumerate((3, 10)):
        e(f's_add_u32 m0, s45, {(14+x)*1024 - (ks%4)*1024}\ns_nop 0')
        e.vm(f'buffer_load_dwordx4 v{SH+sg(2*ks+1)}, s[{sU}:{sU+3}], s{56+ks//4} offen offset:{(ks%4)*1024} lds', 'u')
    WA = 16; HV = 72; B = 80; AC = 112
    e(f's_lshl_b32 s44, s{su}, 2\ns_add_u32 s44, s44, s{sw}\ns_mul_i32 s44, s44, 14336')
    for ks in range(14):
        if ks and ks % 4 == 0: e('s_add_u32 s44, s44, 4096')
        e.vm(f'buffer_load_dwordx4 {V(WA+4*ks,4)}, v{LL}, s[{sW}:{sW+3}], s44 offen offset:{(ks%4)*1024}', f'w{ks}')
    for g in range(4): e.vm(f'buffer_load_dwordx2 {V(HV+2*g,2)}, v{HA}, s[{sH}:{sH+3}], s{52+g} offen', 'h')
    e.waitvm('u')
    e('s_barrier')
    pf.stamp()
    def rd(ks):
        for g in range(4):
            f = B + 16 * (ks & 1) + 4 * g
            if ks in (3, 10):
                e.ds(f'ds_read_b64 {V(f,2)}, v{LL} offset:{g*16384+ks*1024}', f'b{ks}')
                e.ds(f'ds_read_b64 {V(f+2,2)}, v{LL} offset:{g*16384+(14+(ks==10))*1024+8}', f'b{ks}')
            else:
                e.ds(f'ds_read_b128 {V(f,4)}, v{LL} offset:{g*16384+ks*1024}', f'b{ks}')
    rd(0)
    for ks in range(14):
        if ks + 1 < 14: rd(ks + 1)
        e.waitds(f'b{ks}'); e.waitvm(f'w{ks}')
        for g in range(4):
            c = '0' if ks == 0 else V(AC + 4 * g, 4)
            e(f'v_mfma_f32_16x16x32_bf16 {V(AC+4*g,4)}, {V(WA+4*ks,4)}, {V(B+16*(ks&1)+4*g,4)}, {c}')
    e.waitvm('h')
    unpack(e, WA, HV, 8)
    for i in range(8): e(f'v_pk_add_f32 {V(AC+2*i,2)}, {V(AC+2*i,2)}, {V(WA+2*i,2)}')
    pack(e, HV, AC, 8)
    for g in range(4): e(f'buffer_store_dwordx2 {V(HV+2*g,2)}, v{HA}, s[{sO}:{sO+3}], s{52+g} offen')
    e('s_waitcnt vmcnt(0)')
    pf.flush(DBG, 4, 47)
    e('L_k4_done:\ns_endpgm')
    return e, descriptor(name, 128, 128), f'; @launch kernel={name} grid=(224,1,1) block=(256,1,1) lds=65536'

def gen_k5(name='k5_mlp_kernel'):
    e = Emit(); header(e, name)
    sw, stb, sfc = 40, 41, 42
    sX, sW3, sW4, sO = 4, 8, 12, 16
    BL, HL, ST = 0, 57344, 57344 + 28672
    e('s_cmp_ge_u32 s2, 256\ns_cbranch_scc1 L_k5_done')
    pf = Prof(e, 4, [70, 72, 74, 76, 78, 80], 62, sw); pf.stamp()
    e(f's_load_dwordx2 s[62:63], s[0:1], {A_WS}')
    wave_id(e, sw)
    e(f's_and_b32 s{sfc}, s2, 7\ns_lshr_b32 s{stb}, s2, 3')
    LL, SW_, SR_, BW, HW = 2, 3, 4, 5, 6
    e(f'v_lshlrev_b32 v{LL}, 4, v0\nv_lshlrev_b32 v{SR_}, 3, v0\nv_add_u32 v{SR_}, {ST}, v{SR_}\ns_lshl_b32 s46, s{sw}, 9\nv_add_u32 v{SW_}, s46, v{SR_}')
    e(f's_lshl_b32 s46, s{sw}, 13\nv_add_u32 v{BW}, s46, v{LL}\ns_lshl_b32 s46, s{sw}, 12\ns_add_u32 s46, s46, {HL}\nv_add_u32 v{HW}, s46, v{LL}')
    e(f'v_add_u32 v7, {HL}, v{LL}')
    e(f's_mul_i32 s43, s{stb}, 56\ns_lshl_b32 s44, s{sw}, 1\ns_add_u32 s43, s43, s44\ns_lshl_b32 s52, s43, 10')
    for g in range(1, 4): e(f's_add_u32 s{52+g}, s{51+g}, 14336')
    e('s_waitcnt lgkmcnt(0)')
    srd_off(e, sX, 62, 63, X1, FB)
    srd_off(e, sW3, 62, 63, W3F, 448 * 3584)
    srd_off(e, sW4, 62, 63, W4F, 448 * 3584)
    e(f's_mul_i32 s46, s{sfc}, {FB}\ns_add_u32 s46, s46, {PART2}')
    srd_off(e, sO, 62, 63, 's46', FB)
    RAW, VAL, T = 8, 40, 104
    for g in range(4):
        for k in range(2): e.vm(f'buffer_load_dwordx4 {V(RAW+8*g+4*k,4)}, v{LL}, s[{sX}:{sX+3}], s{52+g} offen offset:{k*1024}', f'x{g}')
    e(f's_mul_i32 s44, s{sfc}, 14\ns_lshl_b32 s45, s{sw}, 1\ns_add_u32 s44, s44, s45\ns_mul_i32 s44, s44, 14336\ns_add_u32 s45, s44, 14336')
    for ks in range(14):
        if ks and ks % 4 == 0: e('s_add_u32 s44, s44, 4096\ns_add_u32 s45, s45, 4096')
        for b in range(2):
            e.vm(f'buffer_load_dwordx4 {A(8*ks+4*b,4)}, v{LL}, s[{sW3}:{sW3+3}], s{44+b} offen offset:{(ks%4)*1024}', f'w{ks}')
    e(f's_lshl_b32 s44, s{sw}, 2\ns_mul_i32 s44, s44, 57344\ns_mul_i32 s45, s{sfc}, 7168\ns_add_u32 s56, s44, s45')
    for k in range(1, 4): e(f's_add_u32 s{56+k}, s{55+k}, 57344')
    e(f's_mov_b32 s50, {f2u(GC0)}\ns_mov_b32 s51, {f2u(GC1)}')
    for g in range(4):
        e.waitvm(f'x{g}'); unpack(e, VAL + 16 * g, RAW + 8 * g, 8)
        v = VAL + 16 * g; t = T + 4 * g
        e(f'v_pk_add_f32 {V(t,2)}, {V(v,2)}, {V(v+2,2)}\nv_pk_mul_f32 {V(t+2,2)}, {V(v,2)}, {V(v,2)}\nv_pk_fma_f32 {V(t+2,2)}, {V(v+2,2)}, {V(v+2,2)}, {V(t+2,2)}')
        for i in range(2, 8): e(f'v_pk_add_f32 {V(t,2)}, {V(t,2)}, {V(v+2*i,2)}\nv_pk_fma_f32 {V(t+2,2)}, {V(v+2*i,2)}, {V(v+2*i,2)}, {V(t+2,2)}')
        e(f'v_add_f32 v{t}, v{t}, v{t+1}\nv_add_f32 v{t+1}, v{t+2}, v{t+3}')
    xop_grp_multi(e, [T + 4 * g + j for g in range(4) for j in range(2)], [T + 4 * g + 2 + j for g in range(4) for j in range(2)], 'v_add_f32')
    for g in range(4): e.ds(f'ds_write_b64 v{SW_}, {V(T+4*g,2)} offset:{g*3584}', 'sw')
    e.waitds0()
    e('s_barrier')
    for g in range(4):
        RB = RAW if g % 2 == 0 else RAW + 16
        for w in range(7): e.ds(f'ds_read_b64 {V(RB+2*w,2)}, v{SR_} offset:{g*3584+w*512}', f'sr{g}')
        if g == 0: continue
        consume = g - 1
        k5_norm(e, consume, RAW, VAL, T, BW)
    k5_norm(e, 3, RAW, VAL, T, BW)
    e.waitds0()
    e('s_barrier')
    B = RAW; AC = VAL
    pf.stamp()
    def rd(base, ks):
        for g in range(4): e.ds(f'ds_read_b128 {V(B+16*(ks&1)+4*g,4)}, v{base} offset:{(ks*4+g)*1024}', f'b{ks}')
    rd(LL, 0)
    for ks in range(14):
        if ks + 1 < 14: rd(LL, ks + 1)
        e.waitds(f'b{ks}'); e.waitvm(f'w{ks}')
        for b in range(2):
            for g in range(4):
                d = AC + 16 * b + 4 * g
                c = '0' if ks == 0 else V(d, 4)
                e(f'v_mfma_f32_16x16x32_bf16 {V(d,4)}, {A(8*ks+4*b,4)}, {V(B+16*(ks&1)+4*g,4)}, {c}')
        for b in range(2):
            y = 2 * ks + b; k2, blk = divmod(y, 4)
            if y == 16:
                for k in range(4): e(f's_add_u32 s{56+k}, s{56+k}, 4096')
            e.vm(f'buffer_load_dwordx4 {A(4*y,4)}, v{LL}, s[{sW4}:{sW4+3}], s{56+blk} offen offset:{(k2%4)*1024}', f'z{k2}')
    pf.stamp()
    e('s_nop 5')
    gelu(e, list(range(AC, AC + 32)), list(range(T, T + 32)), 50, 51)
    for g in range(4):
        o = T + 4 * g
        e(f'v_cvt_pk_bf16_f32 v{o}, v{AC+4*g}, v{AC+4*g+1}\nv_cvt_pk_bf16_f32 v{o+1}, v{AC+4*g+2}, v{AC+4*g+3}')
        e(f'v_cvt_pk_bf16_f32 v{o+2}, v{AC+16+4*g}, v{AC+16+4*g+1}\nv_cvt_pk_bf16_f32 v{o+3}, v{AC+16+4*g+2}, v{AC+16+4*g+3}')
        e.ds(f'ds_write_b128 v{HW}, {V(o,4)} offset:{g*1024}', 'hw')
    e.waitds0()
    e('s_barrier')
    pf.stamp()
    rd(7, 0)
    for k2 in range(7):
        if k2 + 1 < 7: rd(7, k2 + 1)
        e.waitds(f'b{k2}'); e.waitvm(f'z{k2}')
        for blk in range(4):
            for g in range(4):
                d = AC + 16 * blk + 4 * g
                c = '0' if k2 == 0 else V(d, 4)
                e(f'v_mfma_f32_16x16x32_bf16 {V(d,4)}, {A(16*k2+4*blk,4)}, {V(B+16*(k2&1)+4*g,4)}, {c}')
    pf.stamp()
    e('s_nop 7')
    for g in range(4):
        for pr in range(2):
            o = T + 8 * g + 4 * pr; a0 = AC + 32 * pr + 4 * g; a1 = a0 + 16
            e(f'v_cvt_pk_bf16_f32 v{o}, v{a0}, v{a0+1}\nv_cvt_pk_bf16_f32 v{o+1}, v{a0+2}, v{a0+3}')
            e(f'v_cvt_pk_bf16_f32 v{o+2}, v{a1}, v{a1+1}\nv_cvt_pk_bf16_f32 v{o+3}, v{a1+2}, v{a1+3}')
            e(f'buffer_store_dwordx4 {V(o,4)}, v{LL}, s[{sO}:{sO+3}], s{52+g} offen offset:{pr*1024}')
    e('s_waitcnt vmcnt(0)')
    pf.flush(DBG, 4, 47)
    e('L_k5_done:\ns_endpgm')
    return e, descriptor(name, 256, 144), f'; @launch kernel={name} grid=(256,1,1) block=(448,1,1) lds={ST+14336}'

def k5_norm(e, g, RAW, VAL, T, BW):
    RB = RAW if g % 2 == 0 else RAW + 16
    t = T + 16; v = VAL + 16 * g
    e.waitds(f'sr{g}')
    e(f'v_pk_add_f32 {V(t,2)}, {V(RB,2)}, {V(RB+2,2)}')
    for w in range(2, 7): e(f'v_pk_add_f32 {V(t,2)}, {V(t,2)}, {V(RB+2*w,2)}')
    e(f'v_mul_f32 v{t+2}, {f2u(-1.0/448)}, v{t}\nv_mov_b32 v{t+3}, {f2u(1e-5)}\nv_fmac_f32 v{t+3}, {f2u(1.0/448)}, v{t+1}')
    e(f'v_fma_f32 v{t+3}, -v{t+2}, v{t+2}, v{t+3}\nv_max_f32 v{t+3}, {f2u(1e-5)}, v{t+3}\nv_rsq_f32 v{t+4}, v{t+3}')
    for i in range(8): e(f'v_pk_add_f32 {V(v+2*i,2)}, {V(v+2*i,2)}, {V(t+2,2)} op_sel_hi:[1,0]')
    for i in range(8): e(f'v_pk_mul_f32 {V(v+2*i,2)}, {V(v+2*i,2)}, {V(t+4,2)} op_sel_hi:[1,0]')
    o = T + 24 + 8 * (g & 1)
    pack(e, o, v, 8)
    for k in range(2): e.ds(f'ds_write_b128 v{BW}, {V(o+4*k,4)} offset:{(k*4+g)*1024}', 'bw')

def gen_k6(name='k6_out_kernel'):
    e = Emit(); header(e, name)
    sw = 40
    sP, sX1, sX2, sM, sO = 4, 8, 12, 16, 20
    e('s_cmp_ge_u32 s2, 256\ns_cbranch_scc1 L_k6_done')
    pf = Prof(e, 5, [70, 72, 74, 76, 78, 80], 62, sw); pf.stamp()
    e(f's_load_dwordx2 s[62:63], s[0:1], {A_WS}\ns_load_dwordx2 s[60:61], s[0:1], {A_OUT}')
    e('v_mov_b32 v9, v0')
    wave_id(e, sw)
    LL, MA, TW, OA = 2, 3, 4, 5
    e(f'v_lshlrev_b32 v{LL}, 4, v0\ns_mul_i32 s43, s2, 7\ns_add_u32 s43, s43, s{sw}\ns_lshl_b32 s43, s43, 10')
    e(f's_and_b32 s44, s2, 1\ns_mul_i32 s45, s44, 7\ns_add_u32 s45, s45, s{sw}\ns_lshl_b32 s45, s45, 6')
    e(f'v_lshrrev_b32 v6, 4, v0\nv_lshlrev_b32 v7, 4, v6\nv_add_u32 v{MA}, s45, v7')
    e(f'v_and_b32 v7, 15, v0\nv_mul_u32_u24 v7, 448, v7\nv_lshl_add_u32 v7, v6, 3, v7\ns_lshl_b32 s45, s{sw}, 6\nv_add_u32 v{TW}, s45, v7')
    e(f'v_mul_u32_u24 v6, 2341, v9\nv_lshrrev_b32 v6, 16, v6\nv_mul_u32_u24 v6, 448, v6\nv_lshlrev_b32 v9, 4, v9')
    e(f's_lshr_b32 s45, s2, 1\ns_mul_i32 s45, s45, 14336\ns_mul_i32 s44, s44, 448\ns_add_u32 s45, s45, s44\nv_add3_u32 v{OA}, v6, v9, s45')
    e('s_waitcnt lgkmcnt(0)')
    srd_off(e, sP, 62, 63, PART2, 8 * FB)
    srd_off(e, sX1, 62, 63, X1, FB)
    srd_off(e, sX2, 62, 63, X2, FB)
    srd_off(e, sM, 62, 63, MODF, 6 * 896)
    srd(e, sO, 60, 61, FB)
    PR = 24
    e.vm(f'buffer_load_dwordx4 v[12:15], v{LL}, s[{sX1}:{sX1+3}], s43 offen', 'a')
    e.vm(f'buffer_load_dwordx4 v[16:19], v{LL}, s[{sX2}:{sX2+3}], s43 offen', 'a')
    e.vm(f'buffer_load_dwordx4 v[20:23], v{MA}, s[{sM}:{sM+3}], 0 offen offset:{5*896-4096}' .replace(', 0 offen', ', s46 offen'), 'a') if False else None
    e('s_mov_b32 s46, 4480')
    e.vm(f'buffer_load_dwordx4 v[20:23], v{MA}, s[{sM}:{sM+3}], s46 offen', 'a')
    for p in range(8):
        if p: e(f's_add_u32 s43, s43, {FB}')
        e.vm(f'buffer_load_dwordx4 {V(PR+4*p,4)}, v{LL}, s[{sP}:{sP+3}], s43 offen', f'p{p}')
    AC, T, X2V, GB = 56, 64, 72, 80
    e.waitvm('a')
    unpack(e, AC, 12, 4); unpack(e, X2V, 16, 4); unpack(e, GB, 20, 4)
    for p in range(8):
        e.waitvm(f'p{p}'); unpack(e, T, PR + 4 * p, 4)
        for i in range(4): e(f'v_pk_add_f32 {V(AC+2*i,2)}, {V(AC+2*i,2)}, {V(T+2*i,2)}')
    for i in range(4): e(f'v_pk_fma_f32 {V(AC+2*i,2)}, {V(AC+2*i,2)}, {V(GB+2*i,2)}, {V(X2V+2*i,2)}')
    pack(e, T, AC, 4)
    e(f'ds_write_b64 v{TW}, {V(T,2)}\nds_write_b64 v{TW}, {V(T+2,2)} offset:32\ns_waitcnt lgkmcnt(0)\ns_barrier')
    e(f'ds_read_b128 v[12:15], v9\ns_waitcnt lgkmcnt(0)')
    e(f'buffer_store_dwordx4 v[12:15], v{OA}, s[{sO}:{sO+3}], 0 offen\ns_waitcnt vmcnt(0)')
    pf.flush(DBG, 4, 47)
    e('L_k6_done:\ns_endpgm')
    return e, descriptor(name, 88, 88), f'; @launch kernel={name} grid=(256,1,1) block=(448,1,1) lds=7168'

def gen_tail():
    return [gen_k3(), gen_k4(), gen_k5(), gen_k6()]
```

```python
import sys, os
from asmlib import *
from gen import build
from k1 import gen_k1
from k2 import K2
from tail import gen_tail
def empty(name, grid=1):
    e = Emit(); header(e, name); e('s_endpgm')
    return e, descriptor(name, 8, 8), f'; @launch kernel={name} grid=({grid},1,1) block=(64,1,1) lds=0'
base = [gen_k1(), K2().gen()] + gen_tail()
build('v_base.s', base)
build('v_front.s', [empty('e0_kernel')] + base)
build('v_back.s', base + [empty('e0_kernel')])
build('v_front2.s', [empty('e0_kernel'), empty('e1_kernel')] + base)
```
